```python
import torch

def _softmax(x, axis=-1):
    return torch.softmax(x, dim=axis)
def _gelu(x):
    return torch.nn.functional.gelu(x, approximate="tanh")
def _silu(x):
    return torch.nn.functional.silu(x)
def _sigmoid(x):
    return torch.sigmoid(x)
def _layernorm(x, axis=-1, eps=1e-5):
    m = x.mean(dim=axis, keepdim=True)
    v = x.var(dim=axis, keepdim=True, unbiased=False)
    return (x - m) / torch.sqrt(v + eps)
def _scatter_add(tgt, idx, src, axis=0):
    return tgt.clone().index_add_(axis, idx, src)
def _segment_sum(src, seg, n):
    out = torch.zeros((n,) + src.shape[1:], dtype=src.dtype)
    return out.index_add_(0, seg, src)
def _pad(x, pw):
    flat = tuple(v for pair in reversed(pw) for v in pair)
    return torch.nn.functional.pad(x, flat)

kernel_name = 'recurrent_scan__ssm_conv_s4d__dense_activation_squared_relu__prompt'

def setup_inputs():

    _w = (lambda a: (lambda t: t.to(torch.bfloat16) if t.is_floating_point() else t)(torch.as_tensor(a)))
    def _A_setup():
        Bsz, L, D, N = 1, 2048, 448, 256
        return {
            "u": _w((lambda *s: torch.randn(*s, dtype=torch.bfloat16) * 0.05)(Bsz, L, D)),
            "log_A_real": _w((lambda *s: torch.randn(*s, dtype=torch.bfloat16) * 3.2)(D, N) * 0.5),
            "A_imag": _w((lambda *s: torch.randn(*s, dtype=torch.bfloat16) * 0.05)(D, N) * 3.14),
            "C_real": _w((lambda *s: torch.randn(*s, dtype=torch.bfloat16) * 0.2)(D, N) / N ** 0.5),
            "C_imag": _w((lambda *s: torch.randn(*s, dtype=torch.bfloat16) * 0.2)(D, N) / N ** 0.5),
            "log_dt": _w((lambda *s: torch.randn(*s, dtype=torch.bfloat16) * 0.05)(D) * 0.5 - 4.0),
            "D_skip": _w((lambda *s: torch.randn(*s, dtype=torch.bfloat16) * 0.05)(D)),
        }
    _A_in = _A_setup()

    def _B_setup():
        B, S, D, F = 1, 2048, 448, 1792
        return {
            "x": _w((lambda *s: torch.randn(*s, dtype=torch.bfloat16) * 0.05)(B, S, D)),
            "w1": _w((lambda *s: torch.randn(*s, dtype=torch.bfloat16) * 0.05)(D, F)),
            "b1": _w((lambda *s: torch.randn(*s, dtype=torch.bfloat16) * 0.4)(F)),
            "w2": _w((lambda *s: torch.randn(*s, dtype=torch.bfloat16) * 0.05)(F, D)),
            "b2": _w((lambda *s: torch.randn(*s, dtype=torch.bfloat16) * 0.8)(D)),
        }
    _B_in = _B_setup()

    return {
        "A_u": _A_in["u"],
        "A_log_A_real": _A_in["log_A_real"],
        "A_A_imag": _A_in["A_imag"],
        "A_C_real": _A_in["C_real"],
        "A_C_imag": _A_in["C_imag"],
        "A_log_dt": _A_in["log_dt"],
        "A_D_skip": _A_in["D_skip"],
        "B_x": _B_in["x"],
        "B_w1": _B_in["w1"],
        "B_b1": _B_in["b1"],
        "B_w2": _B_in["w2"],
        "B_b2": _B_in["b2"],
    }

def reference(A_u, A_log_A_real, A_A_imag, A_C_real, A_C_imag, A_log_dt, A_D_skip, B_x, B_w1, B_b1, B_w2, B_b2):
    def _A_ref(u, log_A_real, A_imag, C_real, C_imag, log_dt, D_skip):
        L = u.shape[1]
        dt = torch.exp(log_dt)
        A = -torch.exp(log_A_real) + 1j * A_imag
        C = (C_real + 1j * C_imag) * dt[:, None]
        pos = (lambda x, dt: x.to(dt))(torch.arange(L), log_dt.dtype)
        P = torch.exp((A * dt[:, None])[:, :, None] * pos[None, None, :])
        K = 2.0 * torch.einsum("dn,dnl->dl", C, P).real
        L2 = 2 * L
        u_t = (lambda x, *d: x.permute(*d))(u, 0, 2, 1)
        Kf = (lambda x, *a, **k: torch.fft.rfft(x.float(), *a, **k))(K, L2)
        Uf = (lambda x, *a, **k: torch.fft.rfft(x.float(), *a, **k))(u_t, L2)
        y = (lambda x, *a, **k: torch.fft.irfft(x, *a, **k).to(torch.bfloat16))(Uf * Kf[None, :, :], L2)[:, :, :L]
        y = (lambda x, *d: x.permute(*d))(y, 0, 2, 1)
        return y + u * D_skip[None, None, :]

    def _B_ref(x, w1, b1, w2, b2):
        h = torch.einsum("bsd,df->bsf", x, w1) + b1
        zero = torch.zeros_like(h)
        r = torch.where(h > zero, h, zero)
        h = r * r
        out = torch.einsum("bsf,fd->bsd", h, w2) + b2
        return out

    x = A_u
    xn = _layernorm(x, axis=-1)
    s = _A_ref(xn, A_log_A_real, A_A_imag, A_C_real, A_C_imag, A_log_dt, A_D_skip)
    g = _silu(_B_ref(xn, B_w1, B_b1, B_w2, B_b2))
    return x + s * g
```

```python
import sys

MB = 1 << 20
WS_XN = 0
WS_XNT = 2 * MB
WS_W1T = 4 * MB
WS_W2T = 6 * MB
WS_K = 8 * MB
WS_H = 16 * MB
WS_YT = 24 * MB

L, D, N, F = 2048, 448, 256, 1792


class Kern:
    def __init__(self, name, vgpr=256, sgpr=102):
        self.name = name
        self.lines = []
        self.vgpr = vgpr
        self.sgpr = sgpr
        self.uid = 0

    def __call__(self, s):
        for ln in s.strip("\n").split("\n"):
            self.lines.append("    " + ln.strip())

    def label(self, l):
        self.lines.append(l + ":")

    def newlabel(self, base):
        self.uid += 1
        return f"L_{self.name}_{base}_{self.uid}"

    def text(self):
        out = [".text", f".globl {self.name}", ".p2align 8", f".type {self.name},@function", f"{self.name}:"]
        out += self.lines
        out += ["    s_endpgm"]
        return "\n".join(out)

    def desc(self):
        acc = (self.vgpr + 3) // 4 * 4
        return f""".section .rodata,"a"
.p2align 6
.amdhsa_kernel {self.name}
  .amdhsa_next_free_vgpr {self.vgpr}
  .amdhsa_next_free_sgpr {self.sgpr}
  .amdhsa_accum_offset {acc}
  .amdhsa_group_segment_fixed_size 0
  .amdhsa_kernarg_size 120
  .amdhsa_user_sgpr_count 2
  .amdhsa_user_sgpr_kernarg_segment_ptr 1
  .amdhsa_system_sgpr_workgroup_id_x 1
.end_amdhsa_kernel"""


def srd(k, s, base_s, nbytes):
    k(f"s_mov_b32 s{s}, s{base_s}")
    k(f"s_and_b32 s{s+1}, s{base_s+1}, 0xffff")
    k(f"s_mov_b32 s{s+2}, {nbytes}")
    k(f"s_mov_b32 s{s+3}, 0x00020000")


def wave_reduce(k, r, sdst):
    for sh in (1, 2, 4, 8):
        k("s_nop 1")
        k(f"v_add_f32_dpp v{r}, v{r}, v{r} row_shr:{sh} row_mask:0xf bank_mask:0xf bound_ctrl:0")
    k("s_nop 1")
    k(f"v_add_f32_dpp v{r}, v{r}, v{r} row_bcast:15 row_mask:0xa bank_mask:0xf")
    k("s_nop 1")
    k(f"v_add_f32_dpp v{r}, v{r}, v{r} row_bcast:31 row_mask:0xc bank_mask:0xf")
    k("s_nop 1")
    k(f"v_readlane_b32 s{sdst}, v{r}, 63")
    k("s_nop 1")


def fdiv(k, dst, num, den, t0, t1):
    k(f"v_rcp_f32 v{t0}, v{den}")
    k("s_nop 0")
    k(f"v_mul_f32 v{dst}, v{num}, v{t0}")
    k(f"v_fma_f32 v{t1}, -v{dst}, v{den}, v{num}")
    k(f"v_fma_f32 v{dst}, v{t1}, v{t0}, v{dst}")


def gen_ln():
    k = Kern("ln_kernel", vgpr=128)
    k("s_cmp_ge_u32 s2, 32")
    k("s_cbranch_scc1 L_ln_end")
    k("s_load_dwordx2 s[4:5], s[0:1], 0")
    k("s_load_dwordx2 s[6:7], s[0:1], 112")
    k("v_and_b32 v1, 63, v0")
    k("v_lshrrev_b32 v2, 6, v0")
    k("s_nop 0")
    k("v_readfirstlane_b32 s20, v2")
    k("s_waitcnt lgkmcnt(0)")
    srd(k, 8, 4, L * D * 2)
    srd(k, 12, 6, 0x10000000)
    k("s_lshl_b32 s21, s2, 6")
    k("s_lshl_b32 s22, s20, 4")
    k("s_add_u32 s21, s21, s22")
    k("s_mul_i32 s23, s21, 896")
    k("s_mov_b32 s25, s23")
    k("v_lshlrev_b32 v3, 4, v1")
    k("v_mov_b32 v4, 0x7ff00000")
    k("v_cmp_gt_u32 vcc, 56, v1")
    k("s_nop 1")
    k("v_cndmask_b32 v3, v4, v3, vcc")
    k("s_mov_b64 s[26:27], vcc")
    for i in range(16):
        k(f"buffer_load_dwordx4 v[{16+4*i}:{19+4*i}], v3, s[8:11], s23 offen")
        k("s_add_u32 s23, s23, 896")
    k("v_lshlrev_b32 v5, 4, v1")
    k("s_mul_i32 s28, s20, 16*912")
    k("v_add_u32 v5, s28, v5")
    for i in range(16):
        R = 16 + 4 * i
        k(f"s_waitcnt vmcnt({15-i})")
        for j in range(4):
            k(f"v_lshlrev_b32 v{84+2*j}, 16, v{R+j}")
            k(f"v_and_b32 v{85+2*j}, 0xffff0000, v{R+j}")
        k("v_add_f32 v92, v84, v85")
        k("v_add_f32 v93, v86, v87")
        k("v_add_f32 v94, v88, v89")
        k("v_add_f32 v95, v90, v91")
        k("v_add_f32 v92, v92, v93")
        k("v_add_f32 v94, v94, v95")
        k("v_add_f32 v92, v92, v94")
        wave_reduce(k, 92, 24)
        k("v_mov_b32 v96, 0x3b124925")
        k("v_mul_f32 v96, s24, v96")
        k("v_mov_b32 v92, 0")
        for j in range(8):
            k(f"v_sub_f32 v93, v{84+j}, v96")
            k("v_fma_f32 v92, v93, v93, v92")
        k("v_cndmask_b32 v92, 0, v92, s[26:27]")
        wave_reduce(k, 92, 24)
        k("v_mov_b32 v97, 0x3b124925")
        k("v_mul_f32 v97, s24, v97")
        k("v_cvt_pk_bf16_f32 v98, v96, v97")
        k("v_lshlrev_b32 v96, 16, v98")
        k("v_and_b32 v97, 0xffff0000, v98")
        k("v_add_f32 v97, 0x3727c5ac, v97")
        k("v_cvt_pk_bf16_f32 v98, v97, v97")
        k("v_lshlrev_b32 v97, 16, v98")
        k("v_sqrt_f32 v97, v97")
        k("s_nop 0")
        k("v_cvt_pk_bf16_f32 v98, v97, v97")
        k("v_lshlrev_b32 v97, 16, v98")
        for j in range(4):
            k(f"v_sub_f32 v{84+2*j}, v{84+2*j}, v96")
            k(f"v_sub_f32 v{85+2*j}, v{85+2*j}, v96")
            k(f"v_cvt_pk_bf16_f32 v98, v{84+2*j}, v{85+2*j}")
            k(f"v_lshlrev_b32 v{84+2*j}, 16, v98")
            k(f"v_and_b32 v{85+2*j}, 0xffff0000, v98")
        for j in range(8):
            fdiv(k, 100 + j, 84 + j, 97, 98, 99)
        for j in range(4):
            k(f"v_cvt_pk_bf16_f32 v{R+j}, v{100+2*j}, v{101+2*j}")
        k(f"buffer_store_dwordx4 v[{R}:{R+3}], v3, s[12:15], s25 offen")
        k("s_add_u32 s25, s25, 896")
        k("s_mov_b64 exec, s[26:27]")
        k(f"ds_write_b128 v5, v[{R}:{R+3}] offset:{i*912}")
        k("s_mov_b64 exec, -1")
    k("s_waitcnt lgkmcnt(0)")
    k("s_barrier")
    k("v_and_b32 v6, 7, v0")
    k("v_lshrrev_b32 v7, 3, v0")
    k("v_mul_u32_u24 v8, 8*912, v6")
    k("v_lshl_add_u32 v8, v7, 1, v8")
    k("v_lshlrev_b32 v9, 12, v7")
    k("v_lshl_add_u32 v9, v6, 4, v9")
    k("s_lshl_b32 s29, s2, 7")
    k(f"s_add_u32 s29, s29, {WS_XNT}")
    for kk in range(14):
        for e in range(8):
            k(f"ds_read_u16 v{104+e}, v8 offset:{e*912+64*kk}")
        k("s_waitcnt lgkmcnt(0)")
        for e in range(4):
            k(f"v_lshl_or_b32 v{100+e}, v{105+2*e}, 16, v{104+2*e}")
        k("buffer_store_dwordx4 v[100:103], v9, s[12:15], s29 offen")
        k("s_add_u32 s29, s29, 131072")
        k("s_nop 1")
    k.label("L_ln_end")
    return k


def gen_tr():
    k = Kern("tr_kernel", vgpr=32)
    k("s_cmp_ge_u32 s2, 392")
    k("s_cbranch_scc1 L_tr_end")
    k("s_load_dwordx2 s[4:5], s[0:1], 64")
    k("s_load_dwordx2 s[16:17], s[0:1], 80")
    k("s_load_dwordx2 s[6:7], s[0:1], 112")
    k("s_waitcnt lgkmcnt(0)")
    srd(k, 12, 6, 0x10000000)
    k("s_cmp_ge_u32 s2, 196")
    k("s_cbranch_scc1 L_tr_w2")
    k("s_mul_hi_u32 s20, s2, 153391690")
    k("s_mul_i32 s21, s20, 28")
    k("s_sub_u32 s21, s2, s21")
    k("s_mov_b32 s22, 3584")
    k("s_mov_b32 s23, 896")
    k(f"s_mov_b32 s24, {WS_W1T}")
    k("s_branch L_tr_go")
    k.label("L_tr_w2")
    k("s_sub_u32 s25, s2, 196")
    k("s_mul_hi_u32 s20, s25, 613566757")
    k("s_mul_i32 s21, s20, 7")
    k("s_sub_u32 s21, s25, s21")
    k("s_mov_b32 s4, s16")
    k("s_mov_b32 s5, s17")
    k("s_mov_b32 s22, 896")
    k("s_mov_b32 s23, 3584")
    k(f"s_mov_b32 s24, {WS_W2T}")
    k.label("L_tr_go")
    srd(k, 8, 4, D * F * 2)
    k("s_lshl_b32 s26, s20, 6")
    k("s_mul_i32 s26, s26, s22")
    k("s_lshl_b32 s27, s21, 7")
    k("s_add_u32 s26, s26, s27")
    k("s_lshl_b32 s27, s21, 6")
    k("s_mul_i32 s27, s27, s23")
    k("s_lshl_b32 s28, s20, 7")
    k("s_add_u32 s27, s27, s28")
    k("s_add_u32 s27, s27, s24")
    k("v_and_b32 v1, 7, v0")
    k("v_lshrrev_b32 v2, 3, v0")
    k("v_mul_lo_u32 v3, v2, s22")
    k("v_lshl_add_u32 v3, v1, 4, v3")
    k("s_lshl_b32 s29, s22, 5")
    k("s_add_u32 s29, s29, s26")
    k("buffer_load_dwordx4 v[8:11], v3, s[8:11], s26 offen")
    k("buffer_load_dwordx4 v[12:15], v3, s[8:11], s29 offen")
    k("v_mul_u32_u24 v4, 144, v2")
    k("v_lshl_add_u32 v4, v1, 4, v4")
    k("s_waitcnt vmcnt(1)")
    k("ds_write_b128 v4, v[8:11]")
    k("s_waitcnt vmcnt(0)")
    k("ds_write_b128 v4, v[12:15] offset:4608")
    k("s_waitcnt lgkmcnt(0)")
    k("s_barrier")
    k("v_mul_u32_u24 v5, 8*144, v1")
    k("v_lshl_add_u32 v5, v2, 1, v5")
    k("v_mul_lo_u32 v6, v2, s23")
    k("v_lshl_add_u32 v6, v1, 4, v6")
    k("s_lshl_b32 s29, s23, 5")
    k("s_add_u32 s29, s29, s27")
    for i in range(2):
        for e in range(8):
            k(f"ds_read_u16 v{16+8*i+e}, v5 offset:{e*144+64*i}")
    k("s_waitcnt lgkmcnt(0)")
    for i in range(2):
        for e in range(4):
            k(f"v_lshl_or_b32 v{8+4*i+e}, v{17+8*i+2*e}, 16, v{16+8*i+2*e}")
    k("buffer_store_dwordx4 v[8:11], v6, s[12:15], s27 offen")
    k("buffer_store_dwordx4 v[12:15], v6, s[12:15], s29 offen")
    k.label("L_tr_end")
    return k


def gen_kgen():
    k = Kern("kgen_kernel", vgpr=64)
    k("s_cmp_ge_u32 s2, 448")
    k("s_cbranch_scc1 L_kg_end")
    k("s_load_dwordx8 s[4:11], s[0:1], 8")
    k("s_load_dwordx2 s[12:13], s[0:1], 40")
    k("s_load_dwordx2 s[14:15], s[0:1], 112")
    k("s_waitcnt lgkmcnt(0)")
    srd(k, 16, 4, D * N * 2)
    srd(k, 20, 6, D * N * 2)
    srd(k, 24, 8, D * N * 2)
    srd(k, 28, 10, D * N * 2)
    srd(k, 32, 12, D * 2)
    srd(k, 36, 14, 0x10000000)
    k("s_lshl_b32 s40, s2, 9")
    k("s_lshl_b32 s41, s2, 1")
    k("v_lshlrev_b32 v1, 1, v0")
    k("v_mov_b32 v2, 0")
    k("buffer_load_ushort v4, v1, s[16:19], s40 offen")
    k("buffer_load_ushort v5, v1, s[20:23], s40 offen")
    k("buffer_load_ushort v6, v1, s[24:27], s40 offen")
    k("buffer_load_ushort v7, v1, s[28:31], s40 offen")
    k("buffer_load_ushort v8, v2, s[32:35], s41 offen")
    k("s_waitcnt vmcnt(0)")
    for r in (4, 5, 6, 7, 8):
        k(f"v_lshlrev_b32 v{r}, 16, v{r}")
    k("v_mov_b32 v9, 0x3fb8aa3b")
    k("v_mul_f32 v4, v4, v9")
    k("v_mul_f32 v8, v8, v9")
    k("v_exp_f32 v4, v4")
    k("v_exp_f32 v8, v8")
    k("s_nop 0")
    k("v_cvt_pk_bf16_f32 v10, v4, v8")
    k("v_lshlrev_b32 v4, 16, v10")
    k("v_and_b32 v8, 0xffff0000, v10")
    k("v_mul_f32 v4, v4, v8")
    k("v_sub_f32 v4, 0, v4")
    k("v_mul_f32 v4, v4, v9")
    k("v_mul_f32 v5, v5, v8")
    k("v_mul_f32 v5, 0.15915494, v5")
    k("v_mul_f32 v6, v6, v8")
    k("v_mul_f32 v7, v7, v8")
    k("v_add_f32 v6, v6, v6")
    k("v_add_f32 v7, v7, v7")
    k("v_lshlrev_b32 v3, 4, v0")
    k("ds_write_b128 v3, v[4:7]")
    k("s_waitcnt lgkmcnt(0)")
    k("s_barrier")
    for i in range(8):
        k(f"v_add_u32 v{16+i}, {256*i}, v0")
        k(f"v_cvt_f32_u32 v{16+i}, v{16+i}")
        k(f"v_cvt_pk_bf16_f32 v{16+i}, v{16+i}, v{16+i}")
        k(f"v_lshlrev_b32 v{16+i}, 16, v{16+i}")
        k(f"v_mov_b32 v{24+i}, 0")
    k("v_mov_b32 v3, 0")
    k("s_mov_b32 s42, 0")
    k.label("L_kg_loop")
    k("ds_read_b128 v[4:7], v3")
    k("v_add_u32 v3, 16, v3")
    k("s_waitcnt lgkmcnt(0)")
    for i in range(8):
        k(f"v_mul_f32 v{32+i}, v4, v{16+i}")
        k(f"v_mul_f32 v{40+i}, v5, v{16+i}")
        k(f"v_exp_f32 v{32+i}, v{32+i}")
        k(f"v_fract_f32 v{40+i}, v{40+i}")
        k(f"v_sin_f32 v{48+i}, v{40+i}")
        k(f"v_cos_f32 v{40+i}, v{40+i}")
    for i in range(8):
        k(f"v_mul_f32 v{40+i}, v6, v{40+i}")
        k(f"v_fma_f32 v{40+i}, -v7, v{48+i}, v{40+i}")
        k(f"v_fma_f32 v{24+i}, v{32+i}, v{40+i}, v{24+i}")
    k("s_add_u32 s42, s42, 1")
    k("s_cmp_lt_u32 s42, 256")
    k("s_cbranch_scc1 L_kg_loop")
    k("s_lshl_b32 s40, s2, 13")
    k(f"s_add_u32 s40, s40, {WS_K}")
    k("v_lshlrev_b32 v1, 2, v0")
    for i in range(8):
        k(f"buffer_store_dword v{24+i}, v1, s[36:39], s40 offen offset:{1024*i}" if i < 4 else
          f"buffer_store_dword v{24+i}, v1, s[36:39], s43 offen offset:{1024*(i-4)}")
        if i == 3:
            k("s_add_u32 s43, s40, 4096")
    k.label("L_kg_end")
    return k


def gen_gemm1():
    k = Kern("gemm1_kernel", vgpr=160)
    k("s_cmp_ge_u32 s2, 224")
    k("s_cbranch_scc1 L_g1_end")
    k("s_load_dwordx2 s[4:5], s[0:1], 72")
    k("s_load_dwordx2 s[6:7], s[0:1], 112")
    k("s_mul_hi_u32 s20, s2, 306783379")
    k("s_mul_i32 s21, s20, 14")
    k("s_sub_u32 s21, s2, s21")
    k("v_and_b32 v1, 63, v0")
    k("v_lshrrev_b32 v2, 6, v0")
    k("s_nop 0")
    k("v_readfirstlane_b32 s22, v2")
    k("s_waitcnt lgkmcnt(0)")
    srd(k, 8, 4, F * 2)
    srd(k, 12, 6, 0x10000000)
    k("s_lshr_b32 s23, s22, 1")
    k("s_and_b32 s24, s22, 1")
    k("v_lshrrev_b32 v3, 3, v0")
    k("v_and_b32 v4, 7, v0")
    k("v_mul_u32_u24 v5, 896, v3")
    k("v_lshl_add_u32 v5, v4, 4, v5")
    k("s_mul_i32 s25, s20, 128*896")
    k("s_mul_i32 s26, s21, 128*896")
    k(f"s_add_u32 s26, s26, {WS_W1T}")
    for i in range(4):
        k(f"v_add_u32 v{6+i}, {i*28672}, v5")
    k("v_mul_u32_u24 v10, 144, v3")
    k("v_lshl_add_u32 v10, v4, 4, v10")
    k("v_add_u32 v80, 36864, v10")
    k("v_and_b32 v11, 31, v1")
    k("v_lshrrev_b32 v12, 5, v1")
    k("v_mul_u32_u24 v13, 144, v11")
    k("v_lshl_add_u32 v13, v12, 4, v13")
    k("s_mul_i32 s27, s23, 64*144")
    k("s_mul_i32 s28, s24, 64*144")
    k("s_add_u32 s28, s28, 18432")
    k("v_add_u32 v14, s27, v13")
    k("v_add_u32 v15, s28, v13")
    ACC = 96
    for r in range(64):
        k(f"v_mov_b32 v{ACC+r}, 0")
    ST = 16

    def gload(kc):
        k(f"s_add_u32 s29, s25, {kc*128}")
        k(f"s_add_u32 s30, s26, {kc*128}")
        for i in range(4):
            k(f"buffer_load_dwordx4 v[{ST+4*i}:{ST+4*i+3}], v{6+i}, s[12:15], s29 offen")
        for i in range(4):
            k(f"buffer_load_dwordx4 v[{ST+16+4*i}:{ST+16+4*i+3}], v{6+i}, s[12:15], s30 offen")

    def lwrite(buf):
        k("s_waitcnt vmcnt(0)")
        va = 80 if buf else 10
        for i in range(4):
            k(f"ds_write_b128 v{va}, v[{ST+4*i}:{ST+4*i+3}] offset:{i*4608}")
        for i in range(4):
            k(f"ds_write_b128 v{va}, v[{ST+16+4*i}:{ST+16+4*i+3}] offset:{18432+i*4608}")

    gload(0)
    lwrite(0)
    k("s_waitcnt lgkmcnt(0)")
    k("s_barrier")
    FR = 48
    for kc in range(7):
        buf = kc & 1
        if kc < 6:
            gload(kc + 1)
        for ks in range(4):
            o = buf * 36864 + ks * 32
            k(f"ds_read_b128 v[{FR}:{FR+3}], v14 offset:{o}")
            k(f"ds_read_b128 v[{FR+4}:{FR+7}], v14 offset:{o+32*144}")
            k(f"ds_read_b128 v[{FR+8}:{FR+11}], v15 offset:{o}")
            k(f"ds_read_b128 v[{FR+12}:{FR+15}], v15 offset:{o+32*144}")
            k("s_waitcnt lgkmcnt(0)")
            for mi in range(2):
                for ni in range(2):
                    a = ACC + 16 * (2 * mi + ni)
                    k(f"v_mfma_f32_32x32x16_bf16 v[{a}:{a+15}], v[{FR+4*mi}:{FR+4*mi+3}], v[{FR+8+4*ni}:{FR+8+4*ni+3}], v[{a}:{a+15}]")
        if kc < 6:
            lwrite(1 - buf)
        k("s_waitcnt lgkmcnt(0)")
        k("s_barrier")
    k("s_nop 15")
    k("s_nop 15")
    k("s_lshl_b32 s29, s21, 7")
    k("s_lshl_b32 s30, s24, 6")
    k("s_add_u32 s29, s29, s30")
    k("v_add_u32 v16, s29, v11")
    k("v_lshlrev_b32 v16, 1, v16")
    k("buffer_load_ushort v17, v16, s[8:11], 0 offen")
    k("buffer_load_ushort v18, v16, s[8:11], 0 offen offset:64")
    k("s_lshl_b32 s29, s20, 7")
    k("s_lshl_b32 s30, s23, 6")
    k("s_add_u32 s29, s29, s30")
    k("v_lshlrev_b32 v19, 2, v12")
    k("v_add_u32 v19, s29, v19")
    k("v_mul_u32_u24 v19, 3584, v19")
    k("v_add_u32 v19, v19, v16")
    k(f"v_add_u32 v19, {WS_H}, v19")
    k("s_waitcnt vmcnt(0)")
    k("v_lshlrev_b32 v17, 16, v17")
    k("v_lshlrev_b32 v18, 16, v18")
    for mi in range(2):
        for ni in range(2):
            for r in range(16):
                a = ACC + 16 * (2 * mi + ni) + r
                row = 32 * mi + 8 * (r >> 2) + (r & 3)
                k(f"v_cvt_pk_bf16_f32 v20, v{a}, v{a}")
                k("v_lshlrev_b32 v20, 16, v20")
                k(f"v_add_f32 v20, v20, v{17+ni}")
                k("v_cvt_pk_bf16_f32 v20, v20, v20")
                k("v_lshlrev_b32 v20, 16, v20")
                k("v_max_f32 v20, 0, v20")
                k("v_mul_f32 v20, v20, v20")
                k(f"v_cvt_pk_bf16_f32 v{a}, v20, v20")
                k(f"s_mov_b32 s29, {row*3584+64*ni}")
                k(f"buffer_store_short v{a}, v19, s[12:15], s29 offen")
    k.label("L_g1_end")
    return k


def gen_conv():
    k = Kern("conv_kernel", vgpr=128)
    UB = 0
    ZS = 7680
    CP = 7680 + 8448
    k("s_cmp_ge_u32 s2, 448")
    k("s_cbranch_scc1 L_cv_end")
    k("s_load_dwordx2 s[6:7], s[0:1], 112")
    k("v_and_b32 v1, 63, v0")
    k("v_lshrrev_b32 v2, 6, v0")
    k("s_nop 0")
    k("v_readfirstlane_b32 s22, v2")
    k("s_waitcnt lgkmcnt(0)")
    srd(k, 12, 6, 0x10000000)
    k("s_lshl_b32 s20, s2, 12")
    k(f"s_add_u32 s20, s20, {WS_XNT}")
    k("v_lshlrev_b32 v3, 4, v0")
    k("buffer_load_dwordx4 v[8:11], v3, s[12:15], s20 offen")
    k("s_lshl_b32 s21, s2, 13")
    k(f"s_add_u32 s21, s21, {WS_K}")
    k("v_lshlrev_b32 v4, 5, v0")
    k("v_sub_u32 v4, (2040*4), v4")
    k("buffer_load_dwordx4 v[12:15], v4, s[12:15], s21 offen")
    k("buffer_load_dwordx4 v[16:19], v4, s[12:15], s21 offen offset:16")
    k("v_mov_b32 v20, 0")
    k("v_mov_b32 v21, 0")
    k("v_mov_b32 v22, 0")
    k("v_mov_b32 v23, 0")
    k("v_cmp_gt_u32 vcc, 160, v0")
    k("s_and_saveexec_b64 s[24:25], vcc")
    k("ds_write_b128 v3, v[20:23]")
    k("s_mov_b64 exec, s[24:25]")
    k("v_cmp_gt_u32 vcc, 6, v0")
    k("s_and_saveexec_b64 s[24:25], vcc")
    k(f"ds_write_b128 v3, v[20:23] offset:{ZS+4096}")
    k(f"ds_write_b128 v3, v[20:23] offset:{ZS+4224+4096}")
    k("s_mov_b64 exec, s[24:25]")
    k("v_lshrrev_b32 v5, 2, v0")
    k("v_and_b32 v6, 3, v0")
    k("v_mul_u32_u24 v5, 80, v5")
    k("v_lshl_add_u32 v5, v6, 4, v5")
    k("s_waitcnt vmcnt(2)")
    k(f"ds_write_b128 v5, v[8:11] offset:{32*80}")
    k("s_waitcnt vmcnt(0)")
    src = [19, 18, 17, 16, 15, 14, 13, 12]
    for p in range(4):
        a, b = src[2 * p], src[2 * p + 1]
        k(f"v_cvt_pk_bf16_f32 v{24+p}, v{a}, v{b}")
        k(f"v_lshlrev_b32 v28, 16, v{24+p}")
        k(f"v_and_b32 v29, 0xffff0000, v{24+p}")
        k(f"v_sub_f32 v28, v{a}, v28")
        k(f"v_sub_f32 v29, v{b}, v29")
        k(f"v_cvt_pk_bf16_f32 v{32+p}, v28, v29")
    k(f"ds_write_b128 v3, v[24:27] offset:{ZS}")
    k(f"ds_write_b128 v3, v[32:35] offset:{ZS+4224}")
    k("s_waitcnt lgkmcnt(0)")
    k("s_barrier")
    k("v_add_u32 v36, 33280, v3")
    for part in range(2):
        va = 36 if part else 3
        k(f"ds_read_b128 v[8:11], v3 offset:{ZS+part*4224}")
        k(f"ds_read_b128 v[12:15], v3 offset:{ZS+part*4224+16}")
        k("s_waitcnt lgkmcnt(0)")
        for s in range(8):
            if s % 2 == 0:
                base = 8 + s // 2
                if base % 2 == 0:
                    k(f"ds_write_b128 v{va}, v[{base}:{base+3}] offset:{CP+s*4160}")
                else:
                    for q in range(4):
                        k(f"v_mov_b32 v{16+q}, v{base+q}")
                    k(f"ds_write_b128 v{va}, v[16:19] offset:{CP+s*4160}")
            else:
                for q in range(4):
                    lo = 8 + q + (s - 1) // 2
                    k(f"v_alignbit_b32 v{16+q}, v{lo+1}, v{lo}, 16")
                k(f"ds_write_b128 v{va}, v[16:19] offset:{CP+s*4160}")
            k("s_nop 1")
    k("v_cmp_gt_u32 vcc, 4, v0")
    k("s_and_saveexec_b64 s[24:25], vcc")
    for part in range(2):
        for s in range(8):
            k(f"ds_write_b128 v{36 if part else 3}, v[20:23] offset:{CP+s*4160+4096}")
    k("s_mov_b64 exec, s[24:25]")
    k("s_waitcnt lgkmcnt(0)")
    k("s_barrier")
    k("s_and_b32 s23, s22, 1")
    k("s_lshr_b32 s24, s22, 1")
    k("v_and_b32 v4, 31, v1")
    k("v_lshrrev_b32 v5, 5, v1")
    k("v_sub_u32 v6, 7, v4")
    k("v_and_b32 v6, 7, v6")
    k("v_sub_u32 v7, 31, v4")
    k("v_lshl_add_u32 v7, v5, 3, v7")
    k("s_lshl_b32 s25, s23, 4")
    k("v_add_u32 v7, s25, v7")
    k("v_sub_u32 v7, v7, v6")
    k("v_lshlrev_b32 v7, 1, v7")
    k("v_mul_u32_u24 v8, 4160, v6")
    k("v_add_u32 v7, v7, v8")
    k("s_mul_i32 s25, s24, 33280")
    k(f"s_add_u32 s25, s25, {CP}")
    k("v_add_u32 v7, s25, v7")
    k("v_add_u32 v8, 1, v4")
    k("v_mul_u32_u24 v8, 80, v8")
    k("v_lshl_add_u32 v8, v5, 4, v8")
    k("s_lshl_b32 s25, s23, 5")
    k("v_add_u32 v8, s25, v8")
    A0, A1 = 64, 80
    for r in range(32):
        k(f"v_mov_b32 v{A0+r}, 0")
    FR = [16, 28]

    def reads(r):
        f = FR[r & 1]
        k(f"ds_read_b128 v[{f}:{f+3}], v7 offset:{64*(63-r)}")
        k(f"ds_read_b128 v[{f+4}:{f+7}], v8 offset:{80*(63-r)}")
        if r < 32:
            k(f"ds_read_b128 v[{f+8}:{f+11}], v8 offset:{80*(31-r)}")

    reads(0)
    for r in range(64):
        f = FR[r & 1]
        if r < 63:
            reads(r + 1)
            k(f"s_waitcnt lgkmcnt({3 if r+1 < 32 else 2})")
        else:
            k("s_waitcnt lgkmcnt(0)")
        k(f"v_mfma_f32_32x32x16_bf16 v[{A1}:{A1+15}], v[{f+4}:{f+7}], v[{f}:{f+3}], v[{A1}:{A1+15}]")
        if r < 32:
            k(f"v_mfma_f32_32x32x16_bf16 v[{A0}:{A0+15}], v[{f+8}:{f+11}], v[{f}:{f+3}], v[{A0}:{A0+15}]")
    k("s_nop 15")
    k("s_nop 15")
    k("s_barrier")
    k("s_lshl_b32 s25, s22, 13")
    k("v_lshlrev_b32 v9, 2, v1")
    k("v_add_u32 v10, s25, v9")
    for r in range(32):
        k(f"ds_write_b32 v10, v{A0+r} offset:{256*r}")
    k("s_waitcnt lgkmcnt(0)")
    k("s_barrier")
    k("s_lshl_b32 s25, s22, 11")
    k("v_add_u32 v10, s25, v9")
    for w in range(4):
        for q in range(8):
            k(f"ds_read_b32 v{16+8*w+q}, v10 offset:{8192*w+256*q}")
    k("s_waitcnt lgkmcnt(0)")
    for q in range(8):
        k(f"v_add_f32 v{16+q}, v{16+q}, v{24+q}")
        k(f"v_add_f32 v{32+q}, v{32+q}, v{40+q}")
        k(f"v_add_f32 v{16+q}, v{16+q}, v{32+q}")
        k(f"v_cvt_pk_bf16_f32 v{16+q}, v{16+q}, v{16+q}")
    k("s_lshl_b32 s25, s24, 11")
    k("s_lshl_b32 s26, s23, 10")
    k("s_add_u32 s25, s25, s26")
    k("s_lshl_b32 s26, s2, 12")
    k("s_add_u32 s25, s25, s26")
    k(f"s_add_u32 s25, s25, {WS_YT}")
    k("v_lshlrev_b32 v9, 8, v5")
    k("v_lshl_add_u32 v9, v4, 1, v9")
    for q in range(8):
        k(f"buffer_store_short v{16+q}, v9, s[12:15], s25 offen offset:{64*(8*(q>>2)+(q&3))}")
    k.label("L_cv_end")
    return k


def gen_gemm2():
    k = Kern("gemm2_kernel", vgpr=128)
    k("s_cmp_ge_u32 s2, 224")
    k("s_cbranch_scc1 L_g2_end")
    k("s_load_dwordx2 s[4:5], s[0:1], 88")
    k("s_load_dwordx2 s[6:7], s[0:1], 112")
    k("s_load_dwordx2 s[16:17], s[0:1], 48")
    k("s_load_dwordx2 s[18:19], s[0:1], 0")
    k("s_load_dwordx2 s[32:33], s[0:1], 96")
    k("s_mul_hi_u32 s20, s2, 613566757")
    k("s_mul_i32 s21, s20, 7")
    k("s_sub_u32 s21, s2, s21")
    k("v_and_b32 v1, 63, v0")
    k("v_lshrrev_b32 v2, 6, v0")
    k("s_nop 0")
    k("v_readfirstlane_b32 s22, v2")
    k("s_waitcnt lgkmcnt(0)")
    srd(k, 8, 4, D * 2)
    srd(k, 12, 6, 0x10000000)
    srd(k, 36, 16, D * 2)
    srd(k, 40, 18, L * D * 2)
    srd(k, 44, 32, L * D * 2)
    k("s_lshr_b32 s23, s22, 1")
    k("s_and_b32 s24, s22, 1")
    k("v_lshrrev_b32 v3, 4, v0")
    k("v_and_b32 v4, 15, v0")
    k("v_mul_u32_u24 v5, 3584, v3")
    k("v_lshl_add_u32 v5, v4, 4, v5")
    k("s_mul_i32 s25, s20, 64*3584")
    k(f"s_add_u32 s25, s25, {WS_H}")
    k("s_mul_i32 s26, s21, 64*3584")
    k(f"s_add_u32 s26, s26, {WS_W2T}")
    for i in range(4):
        k(f"v_add_u32 v{6+i}, {i*16*3584}, v5")
    k("v_mul_u32_u24 v10, 272, v3")
    k("v_lshl_add_u32 v10, v4, 4, v10")
    k("v_and_b32 v11, 31, v1")
    k("v_lshrrev_b32 v12, 5, v1")
    k("v_mul_u32_u24 v13, 272, v11")
    k("v_lshl_add_u32 v13, v12, 4, v13")
    k("s_mul_i32 s27, s23, 32*272")
    k("s_mul_i32 s28, s24, 32*272")
    k("s_add_u32 s28, s28, 17408")
    k("v_add_u32 v14, s27, v13")
    k("v_add_u32 v15, s28, v13")
    ACC = 96
    for r in range(16):
        k(f"v_mov_b32 v{ACC+r}, 0")
    ST = 16

    def gload():
        for i in range(4):
            k(f"buffer_load_dwordx4 v[{ST+4*i}:{ST+4*i+3}], v{6+i}, s[12:15], s25 offen")
        for i in range(4):
            k(f"buffer_load_dwordx4 v[{ST+16+4*i}:{ST+16+4*i+3}], v{6+i}, s[12:15], s26 offen")
        k("s_add_u32 s25, s25, 256")
        k("s_add_u32 s26, s26, 256")

    def lwrite(buf):
        k("s_waitcnt vmcnt(0)")
        for i in range(4):
            k(f"ds_write_b128 v10, v[{ST+4*i}:{ST+4*i+3}] offset:{buf*34816+i*16*272}")
        for i in range(4):
            k(f"ds_write_b128 v10, v[{ST+16+4*i}:{ST+16+4*i+3}] offset:{buf*34816+17408+i*16*272}")

    gload()
    lwrite(0)
    k("s_waitcnt lgkmcnt(0)")
    k("s_barrier")
    FR = 48
    for kc in range(14):
        buf = kc & 1
        if kc < 13:
            gload()
        for ks in range(8):
            o = buf * 34816 + ks * 32
            f = FR + 8 * (ks & 1)
            k(f"ds_read_b128 v[{f}:{f+3}], v14 offset:{o}")
            k(f"ds_read_b128 v[{f+4}:{f+7}], v15 offset:{o}")
            k("s_waitcnt lgkmcnt(0)")
            k(f"v_mfma_f32_32x32x16_bf16 v[{ACC}:{ACC+15}], v[{f}:{f+3}], v[{f+4}:{f+7}], v[{ACC}:{ACC+15}]")
        if kc < 13:
            lwrite(1 - buf)
        k("s_waitcnt lgkmcnt(0)")
        k("s_barrier")
    k("s_nop 15")
    k("s_nop 15")
    k("s_lshl_b32 s29, s21, 6")
    k("s_lshl_b32 s30, s24, 5")
    k("s_add_u32 s29, s29, s30")
    k("v_add_u32 v16, s29, v11")
    k("v_lshlrev_b32 v17, 1, v16")
    k("buffer_load_ushort v18, v17, s[8:11], 0 offen")
    k("buffer_load_ushort v19, v17, s[36:39], 0 offen")
    k("s_lshl_b32 s29, s20, 6")
    k("s_lshl_b32 s30, s23, 5")
    k("s_add_u32 s29, s29, s30")
    k("v_lshlrev_b32 v20, 2, v12")
    k("v_add_u32 v20, s29, v20")
    k("v_lshlrev_b32 v21, 12, v16")
    k("v_lshl_add_u32 v21, v20, 1, v21")
    k(f"v_add_u32 v21, {WS_YT}, v21")
    for q in range(4):
        k(f"buffer_load_dwordx2 v[{24+2*q}:{25+2*q}], v21, s[12:15], 0 offen offset:{16*q}")
    k("v_mul_u32_u24 v22, 896, v20")
    k("v_add_u32 v22, v22, v17")
    for r in range(16):
        row = 8 * (r >> 2) + (r & 3)
        k(f"s_mov_b32 s29, {row*896}")
        k(f"buffer_load_ushort v{32+r}, v22, s[12:15], s29 offen")
        k(f"buffer_load_ushort v{64+r}, v22, s[40:43], s29 offen")
    k("s_waitcnt vmcnt(0)")
    k("v_lshlrev_b32 v18, 16, v18")
    k("v_lshlrev_b32 v19, 16, v19")
    for r in range(16):
        a = ACC + r
        row = 8 * (r >> 2) + (r & 3)
        yreg = 24 + 2 * (r >> 2) + ((r & 3) >> 1)
        k(f"v_cvt_pk_bf16_f32 v50, v{a}, v{a}")
        k("v_lshlrev_b32 v50, 16, v50")
        k("v_add_f32 v50, v50, v18")
        k("v_cvt_pk_bf16_f32 v50, v50, v50")
        k("v_lshlrev_b32 v50, 16, v50")
        k("v_mul_f32 v51, 0xbfb8aa3b, v50")
        k("v_exp_f32 v51, v51")
        k("s_nop 0")
        k("v_add_f32 v51, 1.0, v51")
        k("v_rcp_f32 v52, v51")
        k("s_nop 0")
        k("v_mul_f32 v53, v50, v52")
        k("v_fma_f32 v54, -v53, v51, v50")
        k("v_fma_f32 v53, v54, v52, v53")
        k("v_cvt_pk_bf16_f32 v53, v53, v53")
        k("v_lshlrev_b32 v53, 16, v53")
        k(f"v_lshlrev_b32 v54, 16, v{32+r}")
        k("v_mul_f32 v54, v54, v19")
        k("v_cvt_pk_bf16_f32 v54, v54, v54")
        k("v_lshlrev_b32 v54, 16, v54")
        if r & 1:
            k(f"v_and_b32 v55, 0xffff0000, v{yreg}")
        else:
            k(f"v_lshlrev_b32 v55, 16, v{yreg}")
        k("v_add_f32 v54, v54, v55")
        k("v_cvt_pk_bf16_f32 v54, v54, v54")
        k("v_lshlrev_b32 v54, 16, v54")
        k("v_mul_f32 v54, v54, v53")
        k("v_cvt_pk_bf16_f32 v54, v54, v54")
        k("v_lshlrev_b32 v54, 16, v54")
        k(f"v_lshlrev_b32 v55, 16, v{64+r}")
        k("v_add_f32 v54, v54, v55")
        k(f"v_cvt_pk_bf16_f32 v{a}, v54, v54")
        k(f"s_mov_b32 s29, {row*896}")
        k(f"buffer_store_short v{a}, v22, s[44:47], s29 offen")
    k.label("L_g2_end")
    return k


def build():
    kernels = [gen_ln(), gen_tr(), gen_kgen(), gen_gemm1(), gen_conv(), gen_gemm2()]
    launches = [
        ("ln_kernel", 32, 256, 64 * 912),
        ("tr_kernel", 392, 256, 64 * 144),
        ("kgen_kernel", 448, 256, 4096),
        ("gemm1_kernel", 224, 256, 73728),
        ("conv_kernel", 448, 256, 7680 + 8448 + 66560),
        ("gemm2_kernel", 224, 256, 69632),
    ]
    hdr = open("recurrent_scan__ssm_conv_s4d__dense_activation_squared_relu__prompt.s.ref").read().split("\n")
    head = [l for l in hdr if l.startswith(";") and "@launch" not in l and "Override" not in l and "grid=ceil" not in l]
    out = head[:]
    for (n, g, b, lds) in launches:
        out.append(f"; @launch kernel={n} grid=({g},1,1) block=({b},1,1) lds={lds}")
    out.append('.amdgcn_target "amdgcn-amd-amdhsa--gfx950"')
    for kk in kernels:
        out.append(kk.text())
    for kk in kernels:
        out.append(kk.desc())
    return "\n".join(out) + "\n"


if __name__ == "__main__":
    dst = sys.argv[1] if len(sys.argv) > 1 else "recurrent_scan__ssm_conv_s4d__dense_activation_squared_relu__prompt.s"
    open(dst, "w").write(build())
    print("wrote", dst)
```

```python
import sys

MB = 1 << 20
WS_XN = 0
WS_XNT = 2 * MB
WS_W1T = 4 * MB
WS_W2T = 6 * MB
WS_K = 8 * MB
WS_H = 16 * MB
WS_YT = 24 * MB

L, D, N, F = 2048, 448, 256, 1792


class Kern:
    def __init__(self, name, vgpr=256, sgpr=102):
        self.name = name
        self.lines = []
        self.vgpr = vgpr
        self.sgpr = sgpr
        self.uid = 0

    def __call__(self, s):
        for ln in s.strip("\n").split("\n"):
            self.lines.append("    " + ln.strip())

    def label(self, l):
        self.lines.append(l + ":")

    def newlabel(self, base):
        self.uid += 1
        return f"L_{self.name}_{base}_{self.uid}"

    def text(self):
        out = [".text", f".globl {self.name}", ".p2align 8", f".type {self.name},@function", f"{self.name}:"]
        out += self.lines
        out += ["    s_endpgm"]
        return "\n".join(out)

    def desc(self):
        acc = (self.vgpr + 3) // 4 * 4
        return f""".section .rodata,"a"
.p2align 6
.amdhsa_kernel {self.name}
  .amdhsa_next_free_vgpr {self.vgpr}
  .amdhsa_next_free_sgpr {self.sgpr}
  .amdhsa_accum_offset {acc}
  .amdhsa_group_segment_fixed_size 0
  .amdhsa_kernarg_size 120
  .amdhsa_user_sgpr_count 2
  .amdhsa_user_sgpr_kernarg_segment_ptr 1
  .amdhsa_system_sgpr_workgroup_id_x 1
.end_amdhsa_kernel"""


def srd(k, s, base_s, nbytes):
    k(f"s_mov_b32 s{s}, s{base_s}")
    k(f"s_and_b32 s{s+1}, s{base_s+1}, 0xffff")
    k(f"s_mov_b32 s{s+2}, {nbytes}")
    k(f"s_mov_b32 s{s+3}, 0x00020000")


def wave_reduce(k, r, sdst):
    for sh in (1, 2, 4, 8):
        k("s_nop 1")
        k(f"v_add_f32_dpp v{r}, v{r}, v{r} row_shr:{sh} row_mask:0xf bank_mask:0xf bound_ctrl:0")
    k("s_nop 1")
    k(f"v_add_f32_dpp v{r}, v{r}, v{r} row_bcast:15 row_mask:0xa bank_mask:0xf")
    k("s_nop 1")
    k(f"v_add_f32_dpp v{r}, v{r}, v{r} row_bcast:31 row_mask:0xc bank_mask:0xf")
    k("s_nop 1")
    k(f"v_readlane_b32 s{sdst}, v{r}, 63")
    k("s_nop 1")


def fdiv(k, dst, num, den, t0, t1):
    k(f"v_rcp_f32 v{t0}, v{den}")
    k("s_nop 0")
    k(f"v_mul_f32 v{dst}, v{num}, v{t0}")
    k(f"v_fma_f32 v{t1}, -v{dst}, v{den}, v{num}")
    k(f"v_fma_f32 v{dst}, v{t1}, v{t0}, v{dst}")


KU_STRIDE = 704


def role_kgen(k):
    RS = 528
    WREG = 33 * RS
    k("s_load_dwordx8 s[4:11], s[0:1], 8")
    k("s_load_dwordx2 s[12:13], s[0:1], 40")
    k("s_load_dwordx2 s[14:15], s[0:1], 112")
    k("v_and_b32 v1, 63, v0")
    k("v_lshrrev_b32 v2, 6, v0")
    k("s_nop 0")
    k("v_readfirstlane_b32 s44, v2")
    k("s_waitcnt lgkmcnt(0)")
    srd(k, 16, 4, D * N * 2)
    srd(k, 20, 6, D * N * 2)
    srd(k, 24, 8, D * N * 2)
    srd(k, 28, 10, D * N * 2)
    srd(k, 32, 12, D * 2)
    srd(k, 36, 14, 0x10000000)
    k("s_lshl_b32 s40, s2, 9")
    k("s_lshl_b32 s41, s2, 1")
    k("v_lshlrev_b32 v3, 3, v1")
    k("v_mov_b32 v2, 0")
    k("buffer_load_dwordx2 v[4:5], v3, s[16:19], s40 offen")
    k("buffer_load_dwordx2 v[6:7], v3, s[20:23], s40 offen")
    k("buffer_load_dwordx2 v[8:9], v3, s[24:27], s40 offen")
    k("buffer_load_dwordx2 v[10:11], v3, s[28:31], s40 offen")
    k("buffer_load_ushort v12, v2, s[32:35], s41 offen")
    k("s_lshl_b32 s45, 1, s44")
    k("s_lshl_b32 s46, 16, s44")
    k("s_lshl_b32 s47, 128, s44")
    k("s_cmp_eq_u32 s44, 0")
    k("s_cselect_b32 s47, 0, s47")
    k("v_cvt_f32_u32 v13, s45")
    k("v_cvt_f32_u32 v14, s46")
    k("v_cvt_f32_u32 v15, s47")
    k("s_mul_i32 s48, s44, %d" % WREG)
    k("v_lshlrev_b32 v16, 3, v1")
    k("v_add_u32 v16, s48, v16")
    k("v_and_b32 v17, 15, v1")
    k("v_lshrrev_b32 v18, 4, v1")
    k("v_mul_u32_u24 v17, %d, v17" % RS)
    k("v_lshl_add_u32 v17, v18, 4, v17")
    k("v_add_u32 v17, s48, v17")
    ACC = 60
    for r in range(4):
        k(f"v_mov_b32 v{ACC+r}, 0")
    k("s_waitcnt vmcnt(0)")
    k("v_lshlrev_b32 v12, 16, v12")
    k("v_mov_b32 v19, 0x3fb8aa3b")
    k("v_mul_f32 v12, v12, v19")
    k("v_exp_f32 v12, v12")
    k("s_nop 0")
    k("v_cvt_pk_bf16_f32 v12, v12, v12")
    k("v_lshlrev_b32 v12, 16, v12")
    for ps in range(4):
        for (src, dst) in ((4, 20), (6, 21), (8, 22), (10, 23)):
            rr = src + (ps >> 1)
            if ps & 1:
                k(f"v_and_b32 v{dst}, 0xffff0000, v{rr}")
            else:
                k(f"v_lshlrev_b32 v{dst}, 16, v{rr}")
        k("v_mul_f32 v20, v20, v19")
        k("v_exp_f32 v20, v20")
        k("s_nop 0")
        k("v_cvt_pk_bf16_f32 v20, v20, v20")
        k("v_lshlrev_b32 v20, 16, v20")
        k("v_mul_f32 v20, v20, v12")
        k("v_mul_f32 v20, v20, v19")
        k("v_sub_f32 v20, 0, v20")
        k("v_mul_f32 v21, v21, v12")
        k("v_mul_f32 v21, 0.15915494, v21")
        k("v_mul_f32 v22, v22, v12")
        k("v_mul_f32 v23, v23, v12")
        k("v_add_f32 v22, v22, v22")
        k("v_add_f32 v23, v23, v23")
        for (q, o) in ((13, 24), (14, 26), (15, 28)):
            k(f"v_mul_f32 v30, v20, v{q}")
            k(f"v_mul_f32 v31, v21, v{q}")
            k("v_exp_f32 v30, v30")
            k("v_fract_f32 v31, v31")
            k(f"v_cos_f32 v{o}, v31")
            k(f"v_sin_f32 v{o+1}, v31")
            k("s_nop 0")
            k(f"v_mul_f32 v{o}, v{o}, v30")
            k(f"v_mul_f32 v{o+1}, v{o+1}, v30")
        k("v_mul_f32 v32, v22, v28")
        k("v_fma_f32 v32, -v23, v29, v32")
        k("v_mul_f32 v33, v22, v29")
        k("v_fma_f32 v33, v23, v28, v33")
        k("v_mov_b32 v34, 1.0")
        k("v_mov_b32 v35, 0")
        for a in range(17):
            k("v_sub_f32 v37, 0, v33")
            k("v_mov_b32 v36, v32")
            k(f"ds_write_b64 v16, v[36:37] offset:{a*RS}")
            if a < 16:
                k("v_mov_b32 v38, v34")
                k("v_mov_b32 v39, v35")
                k(f"ds_write_b64 v16, v[38:39] offset:{(17+a)*RS}")
                k("v_mul_f32 v40, v32, v26")
                k("v_mul_f32 v41, v32, v27")
                k("v_fma_f32 v40, -v33, v27, v40")
                k("v_fma_f32 v33, v33, v26, v41")
                k("v_mov_b32 v32, v40")
                k("v_mul_f32 v42, v34, v24")
                k("v_mul_f32 v43, v34, v25")
                k("v_fma_f32 v42, -v35, v25, v42")
                k("v_fma_f32 v35, v35, v24, v43")
                k("v_mov_b32 v34, v42")
        k("s_waitcnt lgkmcnt(0)")
        for g in range(8):
            fa = 44 + 8 * (g & 1)
            k(f"ds_read_b128 v[{fa}:{fa+3}], v17 offset:{64*g}")
            k(f"ds_read_b128 v[{fa+4}:{fa+7}], v17 offset:{64*g+17*RS}")
            k("s_waitcnt lgkmcnt(0)")
            for j in range(4):
                k(f"v_mfma_f32_16x16x4_f32 v[{ACC}:{ACC+3}], v{fa+j}, v{fa+4+j}, v[{ACC}:{ACC+3}]")
        k("s_nop 7")
    k("s_nop 15")
    k("s_lshl_b32 s49, s44, 7")
    k("s_add_u32 s49, s49, 128")
    k("s_cmp_eq_u32 s44, 0")
    k("s_cselect_b32 s49, 0, s49")
    k("s_cselect_b32 s50, 16, 8")
    k("s_cmp_eq_u32 s44, 3")
    k("s_cselect_b32 s50, 9, s50")
    k("s_mul_i32 s51, s2, %d" % (KU_STRIDE * 4))
    k("s_lshl_b32 s49, s49, 2")
    k("s_add_u32 s51, s51, s49")
    k(f"s_add_u32 s51, s51, {WS_K}")
    k("v_and_b32 v20, 15, v1")
    k("v_lshlrev_b32 v21, 2, v18")
    k("v_lshlrev_b32 v22, 6, v21")
    k("v_lshl_add_u32 v22, v20, 2, v22")
    for r in range(4):
        k(f"v_add_u32 v23, {r}, v21")
        k("v_cmp_gt_u32 vcc, s50, v23")
        k("s_and_saveexec_b64 s[52:53], vcc")
        k(f"buffer_store_dword v{ACC+r}, v22, s[36:39], s51 offen offset:{64*r}")
        k("s_mov_b64 exec, s[52:53]")


def role_ln(k):
    NR = 8
    k("s_load_dwordx2 s[4:5], s[0:1], 0")
    k("s_load_dwordx2 s[6:7], s[0:1], 112")
    k("v_and_b32 v1, 63, v0")
    k("v_lshrrev_b32 v2, 6, v0")
    k("s_nop 0")
    k("v_readfirstlane_b32 s20, v2")
    k("s_waitcnt lgkmcnt(0)")
    srd(k, 8, 4, L * D * 2)
    srd(k, 12, 6, 0x10000000)
    k("s_lshl_b32 s21, s3, 5")
    k("s_lshl_b32 s22, s20, 3")
    k("s_add_u32 s21, s21, s22")
    k("s_mul_i32 s23, s21, 896")
    k("s_mov_b32 s25, s23")
    k("v_lshlrev_b32 v3, 4, v1")
    k("v_mov_b32 v4, 0x7ff00000")
    k("v_cmp_gt_u32 vcc, 56, v1")
    k("s_nop 1")
    k("v_cndmask_b32 v3, v4, v3, vcc")
    k("s_mov_b64 s[26:27], vcc")
    for i in range(NR):
        k(f"buffer_load_dwordx4 v[{16+4*i}:{19+4*i}], v3, s[8:11], s23 offen")
        k("s_add_u32 s23, s23, 896")
    k("v_lshlrev_b32 v5, 4, v1")
    k("s_mul_i32 s28, s20, %d" % (NR * 912))
    k("v_add_u32 v5, s28, v5")
    V = 48
    S = 112
    k("s_waitcnt vmcnt(0)")
    for i in range(NR):
        for j in range(4):
            k(f"v_lshlrev_b32 v{V+8*i+2*j}, 16, v{16+4*i+j}")
            k(f"v_and_b32 v{V+8*i+2*j+1}, 0xffff0000, v{16+4*i+j}")
    for i in range(NR):
        b = V + 8 * i
        k(f"v_add_f32 v{S+i}, v{b}, v{b+1}")
        for j in range(2, 8):
            k(f"v_add_f32 v{S+i}, v{S+i}, v{b+j}")

    def reduce_all(base):
        for sh in ("row_shr:1", "row_shr:2", "row_shr:4", "row_shr:8"):
            k("s_nop 1")
            for i in range(NR):
                k(f"v_add_f32_dpp v{base+i}, v{base+i}, v{base+i} {sh} row_mask:0xf bank_mask:0xf bound_ctrl:0")
        k("s_nop 1")
        for i in range(NR):
            k(f"v_add_f32_dpp v{base+i}, v{base+i}, v{base+i} row_bcast:15 row_mask:0xa bank_mask:0xf")
        k("s_nop 1")
        for i in range(NR):
            k(f"v_add_f32_dpp v{base+i}, v{base+i}, v{base+i} row_bcast:31 row_mask:0xc bank_mask:0xf")
        k("s_nop 1")
        for i in range(NR):
            k(f"v_readlane_b32 s{30+i}, v{base+i}, 63")
        k("s_nop 1")

    reduce_all(S)
    k("v_mov_b32 v6, 0x3b124925")
    for i in range(NR):
        k(f"v_mul_f32 v{S+8+i}, s{30+i}, v6")
        k(f"v_mov_b32 v{S+i}, 0")
    for j in range(8):
        for i in range(NR):
            k(f"v_sub_f32 v7, v{V+8*i+j}, v{S+8+i}")
            k(f"v_fma_f32 v{S+i}, v7, v7, v{S+i}")
    for i in range(NR):
        k(f"v_cndmask_b32 v{S+i}, 0, v{S+i}, s[26:27]")
    reduce_all(S)
    for i in range(NR):
        k(f"v_mul_f32 v{S+i}, s{30+i}, v6")
        k(f"v_cvt_pk_bf16_f32 v7, v{S+8+i}, v{S+i}")
        k(f"v_lshlrev_b32 v{S+8+i}, 16, v7")
        k(f"v_and_b32 v{S+i}, 0xffff0000, v7")
        k(f"v_add_f32 v{S+i}, 0x3727c5ac, v{S+i}")
        k(f"v_cvt_pk_bf16_f32 v7, v{S+i}, v{S+i}")
        k(f"v_lshlrev_b32 v{S+i}, 16, v7")
        k(f"v_sqrt_f32 v{S+i}, v{S+i}")
    for i in range(NR):
        k(f"v_cvt_pk_bf16_f32 v7, v{S+i}, v{S+i}")
        k(f"v_lshlrev_b32 v{S+i}, 16, v7")
        k(f"v_rcp_f32 v{S+16+i}, v{S+i}")
    for i in range(NR):
        b = V + 8 * i
        for j in range(4):
            k(f"v_sub_f32 v{b+2*j}, v{b+2*j}, v{S+8+i}")
            k(f"v_sub_f32 v{b+2*j+1}, v{b+2*j+1}, v{S+8+i}")
            k(f"v_cvt_pk_bf16_f32 v7, v{b+2*j}, v{b+2*j+1}")
            k(f"v_lshlrev_b32 v{b+2*j}, 16, v7")
            k(f"v_and_b32 v{b+2*j+1}, 0xffff0000, v7")
        for j in range(8):
            k(f"v_mul_f32 v8, v{b+j}, v{S+16+i}")
            k(f"v_fma_f32 v9, -v8, v{S+i}, v{b+j}")
            k(f"v_fma_f32 v{b+j}, v9, v{S+16+i}, v8")
        for j in range(4):
            k(f"v_cvt_pk_bf16_f32 v{16+4*i+j}, v{b+2*j}, v{b+2*j+1}")
        k(f"buffer_store_dwordx4 v[{16+4*i}:{19+4*i}], v3, s[12:15], s25 offen")
        k("s_add_u32 s25, s25, 896")
    k("s_mov_b64 exec, s[26:27]")
    for i in range(NR):
        k(f"ds_write_b128 v5, v[{16+4*i}:{19+4*i}] offset:{i*912}")
    k("s_mov_b64 exec, -1")
    k("s_waitcnt lgkmcnt(0)")
    k("s_barrier")
    k("v_and_b32 v6, 3, v0")
    k("v_lshrrev_b32 v7, 2, v0")
    k("v_mul_u32_u24 v8, 8*912, v6")
    k("v_lshl_add_u32 v8, v7, 1, v8")
    k("v_lshlrev_b32 v9, 12, v7")
    k("v_lshl_add_u32 v9, v6, 4, v9")
    k("s_lshl_b32 s29, s3, 6")
    k(f"s_add_u32 s29, s29, {WS_XNT}")
    for kk in range(7):
        for e in range(8):
            k(f"ds_read_u16 v{24+e}, v8 offset:{e*912+128*kk}")
        k("s_waitcnt lgkmcnt(0)")
        for e in range(4):
            k(f"v_lshl_or_b32 v{16+e}, v{25+2*e}, 16, v{24+2*e}")
        k("buffer_store_dwordx4 v[16:19], v9, s[12:15], s29 offen")
        k("s_add_u32 s29, s29, 262144")
        k("s_nop 1")


def role_tr(k):
    k("s_load_dwordx2 s[4:5], s[0:1], 64")
    k("s_load_dwordx2 s[16:17], s[0:1], 80")
    k("s_load_dwordx2 s[6:7], s[0:1], 112")
    k("s_waitcnt lgkmcnt(0)")
    srd(k, 12, 6, 0x10000000)
    k("s_cmp_ge_u32 s3, 196")
    k("s_cbranch_scc1 L_tr_w2")
    k("s_mul_hi_u32 s20, s3, 153391690")
    k("s_mul_i32 s21, s20, 28")
    k("s_sub_u32 s21, s3, s21")
    k("s_mov_b32 s22, 3584")
    k("s_mov_b32 s23, 896")
    k(f"s_mov_b32 s24, {WS_W1T}")
    k("s_branch L_tr_go")
    k.label("L_tr_w2")
    k("s_sub_u32 s25, s3, 196")
    k("s_mul_hi_u32 s20, s25, 613566757")
    k("s_mul_i32 s21, s20, 7")
    k("s_sub_u32 s21, s25, s21")
    k("s_mov_b32 s4, s16")
    k("s_mov_b32 s5, s17")
    k("s_mov_b32 s22, 896")
    k("s_mov_b32 s23, 3584")
    k(f"s_mov_b32 s24, {WS_W2T}")
    k.label("L_tr_go")
    srd(k, 8, 4, D * F * 2)
    k("s_lshl_b32 s26, s20, 6")
    k("s_mul_i32 s26, s26, s22")
    k("s_lshl_b32 s27, s21, 7")
    k("s_add_u32 s26, s26, s27")
    k("s_lshl_b32 s27, s21, 6")
    k("s_mul_i32 s27, s27, s23")
    k("s_lshl_b32 s28, s20, 7")
    k("s_add_u32 s27, s27, s28")
    k("s_add_u32 s27, s27, s24")
    k("v_and_b32 v1, 7, v0")
    k("v_lshrrev_b32 v2, 3, v0")
    k("v_mul_lo_u32 v3, v2, s22")
    k("v_lshl_add_u32 v3, v1, 4, v3")
    k("s_lshl_b32 s29, s22, 5")
    k("s_add_u32 s29, s29, s26")
    k("buffer_load_dwordx4 v[8:11], v3, s[8:11], s26 offen")
    k("buffer_load_dwordx4 v[12:15], v3, s[8:11], s29 offen")
    k("v_mul_u32_u24 v4, 144, v2")
    k("v_lshl_add_u32 v4, v1, 4, v4")
    k("s_waitcnt vmcnt(1)")
    k("ds_write_b128 v4, v[8:11]")
    k("s_waitcnt vmcnt(0)")
    k("ds_write_b128 v4, v[12:15] offset:4608")
    k("s_waitcnt lgkmcnt(0)")
    k("s_barrier")
    k("v_mul_u32_u24 v5, 8*144, v1")
    k("v_lshl_add_u32 v5, v2, 1, v5")
    k("v_mul_lo_u32 v6, v2, s23")
    k("v_lshl_add_u32 v6, v1, 4, v6")
    k("s_lshl_b32 s29, s23, 5")
    k("s_add_u32 s29, s29, s27")
    for i in range(2):
        for e in range(8):
            k(f"ds_read_u16 v{16+8*i+e}, v5 offset:{e*144+64*i}")
    k("s_waitcnt lgkmcnt(0)")
    for i in range(2):
        for e in range(4):
            k(f"v_lshl_or_b32 v{8+4*i+e}, v{17+8*i+2*e}, 16, v{16+8*i+2*e}")
    k("buffer_store_dwordx4 v[8:11], v6, s[12:15], s27 offen")
    k("buffer_store_dwordx4 v[12:15], v6, s[12:15], s29 offen")


def gen_prep():
    k = Kern("prep_kernel", vgpr=136)
    k("s_cmp_ge_u32 s2, 448")
    k("s_cbranch_scc1 L_prep_b")
    role_kgen(k)
    k("s_endpgm")
    k.label("L_prep_b")
    k("s_sub_u32 s3, s2, 448")
    k("s_cmp_ge_u32 s3, 64")
    k("s_cbranch_scc1 L_prep_c")
    role_ln(k)
    k("s_endpgm")
    k.label("L_prep_c")
    k("s_sub_u32 s3, s3, 64")
    k("s_cmp_ge_u32 s3, 392")
    k("s_cbranch_scc1 L_prep_end")
    role_tr(k)
    k.label("L_prep_end")
    return k


def role_gemm1(k):
    k("s_load_dwordx2 s[4:5], s[0:1], 72")
    k("s_load_dwordx2 s[6:7], s[0:1], 112")
    k("s_mul_hi_u32 s20, s3, 306783379")
    k("s_mul_i32 s21, s20, 14")
    k("s_sub_u32 s21, s3, s21")
    k("v_and_b32 v1, 63, v0")
    k("v_lshrrev_b32 v2, 6, v0")
    k("s_nop 0")
    k("v_readfirstlane_b32 s22, v2")
    k("s_waitcnt lgkmcnt(0)")
    srd(k, 8, 4, F * 2)
    srd(k, 12, 6, 0x10000000)
    k("s_lshr_b32 s23, s22, 1")
    k("s_and_b32 s24, s22, 1")
    k("v_lshrrev_b32 v3, 3, v0")
    k("v_and_b32 v4, 7, v0")
    k("v_mul_u32_u24 v5, 896, v3")
    k("v_lshl_add_u32 v5, v4, 4, v5")
    k("s_mul_i32 s25, s20, 128*896")
    k("s_mul_i32 s26, s21, 128*896")
    k(f"s_add_u32 s26, s26, {WS_W1T}")
    for i in range(4):
        k(f"v_add_u32 v{6+i}, {i*28672}, v5")
    k("v_mul_u32_u24 v10, 144, v3")
    k("v_lshl_add_u32 v10, v4, 4, v10")
    k("v_add_u32 v80, 36864, v10")
    k("v_and_b32 v11, 31, v1")
    k("v_lshrrev_b32 v12, 5, v1")
    k("v_mul_u32_u24 v13, 144, v11")
    k("v_lshl_add_u32 v13, v12, 4, v13")
    k("s_mul_i32 s27, s23, 64*144")
    k("s_mul_i32 s28, s24, 64*144")
    k("s_add_u32 s28, s28, 18432")
    k("v_add_u32 v14, s27, v13")
    k("v_add_u32 v15, s28, v13")
    ACC = 96
    ST = [16, 160]

    def gload(kc):
        st = ST[kc & 1]
        k(f"s_add_u32 s29, s25, {kc*128}")
        k(f"s_add_u32 s30, s26, {kc*128}")
        for i in range(4):
            k(f"buffer_load_dwordx4 v[{st+4*i}:{st+4*i+3}], v{6+i}, s[12:15], s29 offen")
        for i in range(4):
            k(f"buffer_load_dwordx4 v[{st+16+4*i}:{st+16+4*i+3}], v{6+i}, s[12:15], s30 offen")

    def lwrite(kc, outstanding):
        st = ST[kc & 1]
        va = 80 if (kc & 1) else 10
        k(f"s_waitcnt vmcnt({outstanding})")
        for i in range(4):
            k(f"ds_write_b128 v{va}, v[{st+4*i}:{st+4*i+3}] offset:{i*4608}")
        for i in range(4):
            k(f"ds_write_b128 v{va}, v[{st+16+4*i}:{st+16+4*i+3}] offset:{18432+i*4608}")

    gload(0)
    gload(1)
    for r in range(64):
        k(f"v_mov_b32 v{ACC+r}, 0")
    lwrite(0, 8)
    k("s_waitcnt lgkmcnt(0)")
    k("s_barrier")
    FR = 48
    for kc in range(7):
        buf = kc & 1
        if kc + 2 < 7:
            gload(kc + 2)
        for ks in range(4):
            o = buf * 36864 + ks * 32
            f = FR + 16 * (ks & 1)
            k(f"ds_read_b128 v[{f}:{f+3}], v14 offset:{o}")
            k(f"ds_read_b128 v[{f+4}:{f+7}], v14 offset:{o+32*144}")
            k(f"ds_read_b128 v[{f+8}:{f+11}], v15 offset:{o}")
            k(f"ds_read_b128 v[{f+12}:{f+15}], v15 offset:{o+32*144}")
            k("s_waitcnt lgkmcnt(0)")
            for mi in range(2):
                for ni in range(2):
                    a = ACC + 16 * (2 * mi + ni)
                    k(f"v_mfma_f32_32x32x16_bf16 v[{a}:{a+15}], v[{f+4*mi}:{f+4*mi+3}], v[{f+8+4*ni}:{f+8+4*ni+3}], v[{a}:{a+15}]")
        if kc < 6:
            lwrite(kc + 1, 8 if kc + 2 < 7 else 0)
        k("s_waitcnt lgkmcnt(0)")
        k("s_barrier")
    k("s_nop 15")
    k("s_nop 15")
    k("s_lshl_b32 s29, s21, 7")
    k("s_lshl_b32 s30, s24, 6")
    k("s_add_u32 s29, s29, s30")
    k("v_add_u32 v16, s29, v11")
    k("v_lshlrev_b32 v16, 1, v16")
    k("buffer_load_ushort v17, v16, s[8:11], 0 offen")
    k("buffer_load_ushort v18, v16, s[8:11], 0 offen offset:64")
    k("s_lshl_b32 s29, s20, 7")
    k("s_lshl_b32 s30, s23, 6")
    k("s_add_u32 s29, s29, s30")
    k("v_lshlrev_b32 v19, 2, v12")
    k("v_add_u32 v19, s29, v19")
    k("v_mul_u32_u24 v19, 3584, v19")
    k("v_add_u32 v19, v19, v16")
    k(f"v_add_u32 v19, {WS_H}, v19")
    k("s_waitcnt vmcnt(0)")
    k("v_lshlrev_b32 v17, 16, v17")
    k("v_lshlrev_b32 v18, 16, v18")
    for mi in range(2):
        for ni in range(2):
            for r in range(16):
                a = ACC + 16 * (2 * mi + ni) + r
                row = 32 * mi + 8 * (r >> 2) + (r & 3)
                k(f"v_cvt_pk_bf16_f32 v20, v{a}, v{a}")
                k("v_lshlrev_b32 v20, 16, v20")
                k(f"v_add_f32 v20, v20, v{17+ni}")
                k("v_cvt_pk_bf16_f32 v20, v20, v20")
                k("v_lshlrev_b32 v20, 16, v20")
                k("v_max_f32 v20, 0, v20")
                k("v_mul_f32 v20, v20, v20")
                k(f"v_cvt_pk_bf16_f32 v{a}, v20, v20")
                k(f"s_mov_b32 s29, {row*3584+64*ni}")
                k(f"buffer_store_short v{a}, v19, s[12:15], s29 offen")


def role_conv(k):
    ZS = 7680
    CP = 7680 + 8448
    k("s_load_dwordx2 s[6:7], s[0:1], 112")
    k("v_and_b32 v1, 63, v0")
    k("v_lshrrev_b32 v2, 6, v0")
    k("s_nop 0")
    k("v_readfirstlane_b32 s22, v2")
    k("s_waitcnt lgkmcnt(0)")
    srd(k, 12, 6, 0x10000000)
    k("s_lshl_b32 s20, s3, 12")
    k(f"s_add_u32 s20, s20, {WS_XNT}")
    k("v_lshlrev_b32 v3, 4, v0")
    k("buffer_load_dwordx4 v[8:11], v3, s[12:15], s20 offen")
    k("s_mul_i32 s21, s3, %d" % (KU_STRIDE * 4))
    k(f"s_add_u32 s21, s21, {WS_K}")
    k("v_lshlrev_b32 v4, 3, v0")
    k("v_sub_u32 v4, 2047, v4")
    for e in range(8):
        k(f"v_subrev_u32 v5, {e}, v4")
        k("v_cvt_f32_u32 v5, v5")
        k("v_cvt_pk_bf16_f32 v5, v5, v5")
        k("v_lshlrev_b32 v5, 16, v5")
        k("v_cvt_u32_f32 v6, v5")
        k("v_lshrrev_b32 v5, 23, v5")
        k("v_subrev_u32 v5, 134, v5")
        k("v_max_i32 v5, 0, v5")
        k("v_lshrrev_b32 v6, v5, v6")
        k("v_lshl_add_u32 v6, v5, 7, v6")
        k("v_lshlrev_b32 v6, 2, v6")
        k(f"buffer_load_dword v{12+e}, v6, s[12:15], s21 offen")
    k("v_mov_b32 v20, 0")
    k("v_mov_b32 v21, 0")
    k("v_mov_b32 v22, 0")
    k("v_mov_b32 v23, 0")
    k("v_cmp_gt_u32 vcc, 160, v0")
    k("s_and_saveexec_b64 s[24:25], vcc")
    k("ds_write_b128 v3, v[20:23]")
    k("s_mov_b64 exec, s[24:25]")
    k("v_cmp_gt_u32 vcc, 6, v0")
    k("s_and_saveexec_b64 s[24:25], vcc")
    k(f"ds_write_b128 v3, v[20:23] offset:{ZS+4096}")
    k(f"ds_write_b128 v3, v[20:23] offset:{ZS+4224+4096}")
    k("s_mov_b64 exec, s[24:25]")
    k("v_lshrrev_b32 v5, 2, v0")
    k("v_and_b32 v6, 3, v0")
    k("v_mul_u32_u24 v5, 80, v5")
    k("v_lshl_add_u32 v5, v6, 4, v5")
    k("s_waitcnt vmcnt(8)")
    k(f"ds_write_b128 v5, v[8:11] offset:{32*80}")
    k("s_waitcnt vmcnt(0)")
    for p in range(4):
        a, b = 12 + 2 * p, 13 + 2 * p
        k(f"v_cvt_pk_bf16_f32 v{24+p}, v{a}, v{b}")
        k(f"v_lshlrev_b32 v28, 16, v{24+p}")
        k(f"v_and_b32 v29, 0xffff0000, v{24+p}")
        k(f"v_sub_f32 v28, v{a}, v28")
        k(f"v_sub_f32 v29, v{b}, v29")
        k(f"v_cvt_pk_bf16_f32 v{32+p}, v28, v29")
    k(f"ds_write_b128 v3, v[24:27] offset:{ZS}")
    k(f"ds_write_b128 v3, v[32:35] offset:{ZS+4224}")
    k("s_waitcnt lgkmcnt(0)")
    k("s_barrier")
    k("v_add_u32 v36, 33280, v3")
    for part in range(2):
        va = 36 if part else 3
        k(f"ds_read_b128 v[8:11], v3 offset:{ZS+part*4224}")
        k(f"ds_read_b128 v[12:15], v3 offset:{ZS+part*4224+16}")
        k("s_waitcnt lgkmcnt(0)")
        for s in range(8):
            if s % 2 == 0:
                base = 8 + s // 2
                if base % 2 == 0:
                    k(f"ds_write_b128 v{va}, v[{base}:{base+3}] offset:{CP+s*4160}")
                else:
                    for q in range(4):
                        k(f"v_mov_b32 v{16+q}, v{base+q}")
                    k(f"ds_write_b128 v{va}, v[16:19] offset:{CP+s*4160}")
            else:
                for q in range(4):
                    lo = 8 + q + (s - 1) // 2
                    k(f"v_alignbit_b32 v{16+q}, v{lo+1}, v{lo}, 16")
                k(f"ds_write_b128 v{va}, v[16:19] offset:{CP+s*4160}")
            k("s_nop 1")
    k("v_cmp_gt_u32 vcc, 4, v0")
    k("s_and_saveexec_b64 s[24:25], vcc")
    for part in range(2):
        for s in range(8):
            k(f"ds_write_b128 v{36 if part else 3}, v[20:23] offset:{CP+s*4160+4096}")
    k("s_mov_b64 exec, s[24:25]")
    k("s_waitcnt lgkmcnt(0)")
    k("s_barrier")
    k("s_and_b32 s23, s22, 1")
    k("s_lshr_b32 s24, s22, 1")
    k("v_and_b32 v4, 31, v1")
    k("v_lshrrev_b32 v5, 5, v1")
    k("v_sub_u32 v6, 7, v4")
    k("v_and_b32 v6, 7, v6")
    k("v_sub_u32 v7, 31, v4")
    k("v_lshl_add_u32 v7, v5, 3, v7")
    k("s_lshl_b32 s25, s23, 4")
    k("v_add_u32 v7, s25, v7")
    k("v_sub_u32 v7, v7, v6")
    k("v_lshlrev_b32 v7, 1, v7")
    k("v_mul_u32_u24 v8, 4160, v6")
    k("v_add_u32 v7, v7, v8")
    k("s_mul_i32 s25, s24, 33280")
    k(f"s_add_u32 s25, s25, {CP}")
    k("v_add_u32 v7, s25, v7")
    k("v_add_u32 v8, 1, v4")
    k("v_mul_u32_u24 v8, 80, v8")
    k("v_lshl_add_u32 v8, v5, 4, v8")
    k("s_lshl_b32 s25, s23, 5")
    k("v_add_u32 v8, s25, v8")
    A0, A1 = 64, 80
    for r in range(32):
        k(f"v_mov_b32 v{A0+r}, 0")
    FR = [16, 28]

    def reads(r):
        f = FR[r & 1]
        k(f"ds_read_b128 v[{f}:{f+3}], v7 offset:{64*(63-r)}")
        k(f"ds_read_b128 v[{f+4}:{f+7}], v8 offset:{80*(63-r)}")
        if r < 32:
            k(f"ds_read_b128 v[{f+8}:{f+11}], v8 offset:{80*(31-r)}")

    reads(0)
    for r in range(64):
        f = FR[r & 1]
        if r < 63:
            reads(r + 1)
            k(f"s_waitcnt lgkmcnt({3 if r+1 < 32 else 2})")
        else:
            k("s_waitcnt lgkmcnt(0)")
        k(f"v_mfma_f32_32x32x16_bf16 v[{A1}:{A1+15}], v[{f+4}:{f+7}], v[{f}:{f+3}], v[{A1}:{A1+15}]")
        if r < 32:
            k(f"v_mfma_f32_32x32x16_bf16 v[{A0}:{A0+15}], v[{f+8}:{f+11}], v[{f}:{f+3}], v[{A0}:{A0+15}]")
    k("s_nop 15")
    k("s_nop 15")
    k("s_barrier")
    k("s_lshl_b32 s25, s22, 13")
    k("v_lshlrev_b32 v9, 2, v1")
    k("v_add_u32 v10, s25, v9")
    for r in range(32):
        k(f"ds_write_b32 v10, v{A0+r} offset:{256*r}")
    k("s_waitcnt lgkmcnt(0)")
    k("s_barrier")
    k("s_lshl_b32 s25, s22, 11")
    k("v_add_u32 v10, s25, v9")
    for w in range(4):
        for q in range(8):
            k(f"ds_read_b32 v{16+8*w+q}, v10 offset:{8192*w+256*q}")
    k("s_waitcnt lgkmcnt(0)")
    for q in range(8):
        k(f"v_add_f32 v{16+q}, v{16+q}, v{24+q}")
        k(f"v_add_f32 v{32+q}, v{32+q}, v{40+q}")
        k(f"v_add_f32 v{16+q}, v{16+q}, v{32+q}")
        k(f"v_cvt_pk_bf16_f32 v{16+q}, v{16+q}, v{16+q}")
    k("s_lshl_b32 s25, s24, 11")
    k("s_lshl_b32 s26, s23, 10")
    k("s_add_u32 s25, s25, s26")
    k("s_lshl_b32 s26, s3, 12")
    k("s_add_u32 s25, s25, s26")
    k(f"s_add_u32 s25, s25, {WS_YT}")
    k("v_lshlrev_b32 v9, 8, v5")
    k("v_lshl_add_u32 v9, v4, 1, v9")
    for q in range(8):
        k(f"buffer_store_short v{16+q}, v9, s[12:15], s25 offen offset:{64*(8*(q>>2)+(q&3))}")


def gen_mid():
    k = Kern("mid_kernel", vgpr=192)
    k("s_cmp_ge_u32 s2, 224")
    k("s_cbranch_scc1 L_mid_b")
    k("s_mov_b32 s3, s2")
    role_gemm1(k)
    k("s_endpgm")
    k.label("L_mid_b")
    k("s_sub_u32 s3, s2, 224")
    k("s_cmp_ge_u32 s3, 448")
    k("s_cbranch_scc1 L_mid_end")
    role_conv(k)
    k.label("L_mid_end")
    return k


def gen_gemm2():
    k = Kern("gemm2_kernel", vgpr=144)
    k("s_cmp_ge_u32 s2, 224")
    k("s_cbranch_scc1 L_g2_end")
    k("s_load_dwordx2 s[4:5], s[0:1], 88")
    k("s_load_dwordx2 s[6:7], s[0:1], 112")
    k("s_load_dwordx2 s[16:17], s[0:1], 48")
    k("s_load_dwordx2 s[18:19], s[0:1], 0")
    k("s_load_dwordx2 s[32:33], s[0:1], 96")
    k("s_mul_hi_u32 s20, s2, 613566757")
    k("s_mul_i32 s21, s20, 7")
    k("s_sub_u32 s21, s2, s21")
    k("v_and_b32 v1, 63, v0")
    k("v_lshrrev_b32 v2, 6, v0")
    k("s_nop 0")
    k("v_readfirstlane_b32 s22, v2")
    k("s_waitcnt lgkmcnt(0)")
    srd(k, 8, 4, D * 2)
    srd(k, 12, 6, 0x10000000)
    srd(k, 36, 16, D * 2)
    srd(k, 40, 18, L * D * 2)
    srd(k, 44, 32, L * D * 2)
    k("s_lshr_b32 s23, s22, 1")
    k("s_and_b32 s24, s22, 1")
    k("v_lshrrev_b32 v3, 4, v0")
    k("v_and_b32 v4, 15, v0")
    k("v_mul_u32_u24 v5, 3584, v3")
    k("v_lshl_add_u32 v5, v4, 4, v5")
    k("s_mul_i32 s25, s20, 64*3584")
    k(f"s_add_u32 s25, s25, {WS_H}")
    k("s_mul_i32 s26, s21, 64*3584")
    k(f"s_add_u32 s26, s26, {WS_W2T}")
    for i in range(4):
        k(f"v_add_u32 v{6+i}, {i*16*3584}, v5")
    k("v_mul_u32_u24 v10, 272, v3")
    k("v_lshl_add_u32 v10, v4, 4, v10")
    k("v_and_b32 v11, 31, v1")
    k("v_lshrrev_b32 v12, 5, v1")
    k("v_mul_u32_u24 v13, 272, v11")
    k("v_lshl_add_u32 v13, v12, 4, v13")
    k("s_mul_i32 s27, s23, 32*272")
    k("s_mul_i32 s28, s24, 32*272")
    k("s_add_u32 s28, s28, 17408")
    k("v_add_u32 v14, s27, v13")
    k("v_add_u32 v15, s28, v13")
    ACC = 96
    for r in range(16):
        k(f"v_mov_b32 v{ACC+r}, 0")
    STS = [16, 112]

    def gload(kc):
        ST = STS[kc & 1]
        for i in range(4):
            k(f"buffer_load_dwordx4 v[{ST+4*i}:{ST+4*i+3}], v{6+i}, s[12:15], s25 offen")
        for i in range(4):
            k(f"buffer_load_dwordx4 v[{ST+16+4*i}:{ST+16+4*i+3}], v{6+i}, s[12:15], s26 offen")
        k("s_add_u32 s25, s25, 256")
        k("s_add_u32 s26, s26, 256")

    def lwrite(kc, outstanding):
        ST = STS[kc & 1]
        buf = kc & 1
        k(f"s_waitcnt vmcnt({outstanding})")
        for i in range(4):
            k(f"ds_write_b128 v10, v[{ST+4*i}:{ST+4*i+3}] offset:{buf*34816+i*16*272}")
        for i in range(4):
            k(f"ds_write_b128 v10, v[{ST+16+4*i}:{ST+16+4*i+3}] offset:{buf*34816+17408+i*16*272}")

    gload(0)
    gload(1)
    lwrite(0, 8)
    k("s_waitcnt lgkmcnt(0)")
    k("s_barrier")
    FR = 48
    for kc in range(14):
        buf = kc & 1
        if kc + 2 < 14:
            gload(kc + 2)
        for ks in range(8):
            o = buf * 34816 + ks * 32
            f = FR + 8 * (ks & 1)
            k(f"ds_read_b128 v[{f}:{f+3}], v14 offset:{o}")
            k(f"ds_read_b128 v[{f+4}:{f+7}], v15 offset:{o}")
            k("s_waitcnt lgkmcnt(0)")
            k(f"v_mfma_f32_32x32x16_bf16 v[{ACC}:{ACC+15}], v[{f}:{f+3}], v[{f+4}:{f+7}], v[{ACC}:{ACC+15}]")
        if kc < 13:
            lwrite(kc + 1, 8 if kc + 2 < 14 else 0)
        k("s_waitcnt lgkmcnt(0)")
        k("s_barrier")
    k("s_nop 15")
    k("s_nop 15")
    k("s_lshl_b32 s29, s21, 6")
    k("s_lshl_b32 s30, s24, 5")
    k("s_add_u32 s29, s29, s30")
    k("v_add_u32 v16, s29, v11")
    k("v_lshlrev_b32 v17, 1, v16")
    k("buffer_load_ushort v18, v17, s[8:11], 0 offen")
    k("buffer_load_ushort v19, v17, s[36:39], 0 offen")
    k("s_lshl_b32 s29, s20, 6")
    k("s_lshl_b32 s30, s23, 5")
    k("s_add_u32 s29, s29, s30")
    k("v_lshlrev_b32 v20, 2, v12")
    k("v_add_u32 v20, s29, v20")
    k("v_lshlrev_b32 v21, 12, v16")
    k("v_lshl_add_u32 v21, v20, 1, v21")
    k(f"v_add_u32 v21, {WS_YT}, v21")
    for q in range(4):
        k(f"buffer_load_dwordx2 v[{24+2*q}:{25+2*q}], v21, s[12:15], 0 offen offset:{16*q}")
    k("v_mul_u32_u24 v22, 896, v20")
    k("v_add_u32 v22, v22, v17")
    for r in range(16):
        row = 8 * (r >> 2) + (r & 3)
        k(f"s_mov_b32 s29, {row*896}")
        k(f"buffer_load_ushort v{32+r}, v22, s[12:15], s29 offen")
        k(f"buffer_load_ushort v{64+r}, v22, s[40:43], s29 offen")
    k("s_waitcnt vmcnt(0)")
    k("v_lshlrev_b32 v18, 16, v18")
    k("v_lshlrev_b32 v19, 16, v19")
    for r in range(16):
        a = ACC + r
        row = 8 * (r >> 2) + (r & 3)
        yreg = 24 + 2 * (r >> 2) + ((r & 3) >> 1)
        k(f"v_cvt_pk_bf16_f32 v50, v{a}, v{a}")
        k("v_lshlrev_b32 v50, 16, v50")
        k("v_add_f32 v50, v50, v18")
        k("v_cvt_pk_bf16_f32 v50, v50, v50")
        k("v_lshlrev_b32 v50, 16, v50")
        k("v_mul_f32 v51, 0xbfb8aa3b, v50")
        k("v_exp_f32 v51, v51")
        k("s_nop 0")
        k("v_add_f32 v51, 1.0, v51")
        k("v_rcp_f32 v52, v51")
        k("s_nop 0")
        k("v_mul_f32 v53, v50, v52")
        k("v_fma_f32 v54, -v53, v51, v50")
        k("v_fma_f32 v53, v54, v52, v53")
        k("v_cvt_pk_bf16_f32 v53, v53, v53")
        k("v_lshlrev_b32 v53, 16, v53")
        k(f"v_lshlrev_b32 v54, 16, v{32+r}")
        k("v_mul_f32 v54, v54, v19")
        k("v_cvt_pk_bf16_f32 v54, v54, v54")
        k("v_lshlrev_b32 v54, 16, v54")
        if r & 1:
            k(f"v_and_b32 v55, 0xffff0000, v{yreg}")
        else:
            k(f"v_lshlrev_b32 v55, 16, v{yreg}")
        k("v_add_f32 v54, v54, v55")
        k("v_cvt_pk_bf16_f32 v54, v54, v54")
        k("v_lshlrev_b32 v54, 16, v54")
        k("v_mul_f32 v54, v54, v53")
        k("v_cvt_pk_bf16_f32 v54, v54, v54")
        k("v_lshlrev_b32 v54, 16, v54")
        k(f"v_lshlrev_b32 v55, 16, v{64+r}")
        k("v_add_f32 v54, v54, v55")
        k(f"v_cvt_pk_bf16_f32 v{a}, v54, v54")
        k(f"s_mov_b32 s29, {row*896}")
        k(f"buffer_store_short v{a}, v22, s[44:47], s29 offen")
    k.label("L_g2_end")
    return k


def build():
    kernels = [gen_prep(), gen_mid(), gen_gemm2()]
    launches = [
        ("prep_kernel", 448 + 64 + 392, 256, 4 * 33 * 528),
        ("mid_kernel", 224 + 448, 256, 7680 + 8448 + 66560),
        ("gemm2_kernel", 224, 256, 69632),
    ]
    hdr = open("recurrent_scan__ssm_conv_s4d__dense_activation_squared_relu__prompt.s.ref").read().split("\n")
    head = [l for l in hdr if l.startswith(";") and "@launch" not in l and "Override" not in l and "grid=ceil" not in l]
    out = head[:]
    for (n, g, b, lds) in launches:
        out.append(f"; @launch kernel={n} grid=({g},1,1) block=({b},1,1) lds={lds}")
    out.append('.amdgcn_target "amdgcn-amd-amdhsa--gfx950"')
    for kk in kernels:
        out.append(kk.text())
    for kk in kernels:
        out.append(kk.desc())
    return "\n".join(out) + "\n"


if __name__ == "__main__":
    dst = sys.argv[1] if len(sys.argv) > 1 else "recurrent_scan__ssm_conv_s4d__dense_activation_squared_relu__prompt.s"
    open(dst, "w").write(build())
    print("wrote", dst)
```

```python
import sys

MB = 1 << 20
WS_XN = 0
WS_XNT = 2 * MB
WS_W1T = 4 * MB
WS_W2T = 6 * MB
WS_K = 8 * MB
WS_H = 16 * MB
WS_YT = 24 * MB
WS_G = 28 * MB

L, D, N, F = 2048, 448, 256, 1792


class Kern:
    def __init__(self, name, vgpr=256, sgpr=102):
        self.name = name
        self.lines = []
        self.vgpr = vgpr
        self.sgpr = sgpr
        self.uid = 0

    def __call__(self, s):
        for ln in s.strip("\n").split("\n"):
            self.lines.append("    " + ln.strip())

    def label(self, l):
        self.lines.append(l + ":")

    def newlabel(self, base):
        self.uid += 1
        return f"L_{self.name}_{base}_{self.uid}"

    def text(self):
        out = [".text", f".globl {self.name}", ".p2align 8", f".type {self.name},@function", f"{self.name}:"]
        out += self.lines
        out += ["    s_endpgm"]
        return "\n".join(out)

    def desc(self):
        acc = (self.vgpr + 3) // 4 * 4
        return f""".section .rodata,"a"
.p2align 6
.amdhsa_kernel {self.name}
  .amdhsa_next_free_vgpr {self.vgpr}
  .amdhsa_next_free_sgpr {self.sgpr}
  .amdhsa_accum_offset {acc}
  .amdhsa_group_segment_fixed_size 0
  .amdhsa_kernarg_size 120
  .amdhsa_user_sgpr_count 2
  .amdhsa_user_sgpr_kernarg_segment_ptr 1
  .amdhsa_system_sgpr_workgroup_id_x 1
.end_amdhsa_kernel"""


import os
STAMPS = os.environ.get("STAMPS", "")


def stamp(k, idx, tag):
    if tag not in STAMPS:
        return
    lab = k.newlabel("st")
    k("s_memtime s[90:91]")
    k("s_load_dwordx2 s[92:93], s[0:1], 104")
    k("s_waitcnt lgkmcnt(0)")
    k("s_cmp_lg_u32 s3, 5")
    k(f"s_cbranch_scc1 {lab}")
    k("v_cmp_eq_u32 vcc, 0, v0")
    k("s_and_saveexec_b64 s[94:95], vcc")
    k(f"s_cbranch_execz {lab}x")
    k("v_mov_b32 v254, s90")
    k("v_mov_b32 v255, 0")
    k(f"global_store_dword v255, v254, s[92:93] offset:{4*idx}")
    k.label(lab + "x")
    k("s_mov_b64 exec, s[94:95]")
    k.label(lab)


def srd(k, s, base_s, nbytes):
    k(f"s_mov_b32 s{s}, s{base_s}")
    k(f"s_and_b32 s{s+1}, s{base_s+1}, 0xffff")
    k(f"s_mov_b32 s{s+2}, {nbytes}")
    k(f"s_mov_b32 s{s+3}, 0x00020000")


def wave_reduce(k, r, sdst):
    for sh in (1, 2, 4, 8):
        k("s_nop 1")
        k(f"v_add_f32_dpp v{r}, v{r}, v{r} row_shr:{sh} row_mask:0xf bank_mask:0xf bound_ctrl:0")
    k("s_nop 1")
    k(f"v_add_f32_dpp v{r}, v{r}, v{r} row_bcast:15 row_mask:0xa bank_mask:0xf")
    k("s_nop 1")
    k(f"v_add_f32_dpp v{r}, v{r}, v{r} row_bcast:31 row_mask:0xc bank_mask:0xf")
    k("s_nop 1")
    k(f"v_readlane_b32 s{sdst}, v{r}, 63")
    k("s_nop 1")


def fdiv(k, dst, num, den, t0, t1):
    k(f"v_rcp_f32 v{t0}, v{den}")
    k("s_nop 0")
    k(f"v_mul_f32 v{dst}, v{num}, v{t0}")
    k(f"v_fma_f32 v{t1}, -v{dst}, v{den}, v{num}")
    k(f"v_fma_f32 v{dst}, v{t1}, v{t0}, v{dst}")


KU_STRIDE = 704


def role_kgen(k):
    RS = 528
    WREG = 33 * RS
    stamp(k, 0, "kg")
    k("s_load_dwordx8 s[4:11], s[0:1], 8")
    k("s_load_dwordx2 s[12:13], s[0:1], 40")
    k("s_load_dwordx2 s[14:15], s[0:1], 112")
    k("v_and_b32 v1, 63, v0")
    k("v_lshrrev_b32 v2, 6, v0")
    k("s_nop 0")
    k("v_readfirstlane_b32 s44, v2")
    k("s_waitcnt lgkmcnt(0)")
    srd(k, 16, 4, D * N * 2)
    srd(k, 20, 6, D * N * 2)
    srd(k, 24, 8, D * N * 2)
    srd(k, 28, 10, D * N * 2)
    srd(k, 32, 12, D * 2)
    srd(k, 36, 14, 0x10000000)
    k("s_lshl_b32 s40, s3, 9")
    k("s_lshl_b32 s41, s3, 1")
    k("v_lshlrev_b32 v3, 3, v1")
    k("v_mov_b32 v2, 0")
    k("buffer_load_dwordx2 v[4:5], v3, s[16:19], s40 offen")
    k("buffer_load_dwordx2 v[6:7], v3, s[20:23], s40 offen")
    k("buffer_load_dwordx2 v[8:9], v3, s[24:27], s40 offen")
    k("buffer_load_dwordx2 v[10:11], v3, s[28:31], s40 offen")
    k("buffer_load_ushort v12, v2, s[32:35], s41 offen")
    k("s_lshl_b32 s45, 1, s44")
    k("s_lshl_b32 s46, 16, s44")
    k("s_lshl_b32 s47, 128, s44")
    k("s_cmp_eq_u32 s44, 0")
    k("s_cselect_b32 s47, 0, s47")
    k("v_cvt_f32_u32 v13, s45")
    k("v_cvt_f32_u32 v14, s46")
    k("v_cvt_f32_u32 v15, s47")
    k("s_mul_i32 s48, s44, %d" % WREG)
    k("v_lshlrev_b32 v16, 3, v1")
    k("v_add_u32 v16, s48, v16")
    k("v_and_b32 v17, 15, v1")
    k("v_lshrrev_b32 v18, 4, v1")
    k("v_mul_u32_u24 v17, %d, v17" % RS)
    k("v_lshl_add_u32 v17, v18, 4, v17")
    k("v_add_u32 v17, s48, v17")
    ACC = 60
    for r in range(4):
        k(f"v_mov_b32 v{ACC+r}, 0")
    k("s_waitcnt vmcnt(0)")
    k("v_lshlrev_b32 v12, 16, v12")
    k("v_mov_b32 v19, 0x3fb8aa3b")
    k("v_mul_f32 v12, v12, v19")
    k("v_exp_f32 v12, v12")
    k("s_nop 0")
    k("v_cvt_pk_bf16_f32 v12, v12, v12")
    k("v_lshlrev_b32 v12, 16, v12")
    stamp(k, 1, "kg")
    for ps in range(4):
        if ps == 1:
            stamp(k, 4, "kg")
        for (src, dst) in ((4, 20), (6, 21), (8, 22), (10, 23)):
            rr = src + (ps >> 1)
            if ps & 1:
                k(f"v_and_b32 v{dst}, 0xffff0000, v{rr}")
            else:
                k(f"v_lshlrev_b32 v{dst}, 16, v{rr}")
        k("v_mul_f32 v20, v20, v19")
        k("v_exp_f32 v20, v20")
        k("s_nop 0")
        k("v_cvt_pk_bf16_f32 v20, v20, v20")
        k("v_lshlrev_b32 v20, 16, v20")
        k("v_mul_f32 v20, v20, v12")
        k("v_mul_f32 v20, v20, v19")
        k("v_sub_f32 v20, 0, v20")
        k("v_mul_f32 v21, v21, v12")
        k("v_mul_f32 v21, 0.15915494, v21")
        k("v_mul_f32 v22, v22, v12")
        k("v_mul_f32 v23, v23, v12")
        k("v_add_f32 v22, v22, v22")
        k("v_add_f32 v23, v23, v23")
        for (q, o) in ((13, 24), (14, 26), (15, 28)):
            k(f"v_mul_f32 v30, v20, v{q}")
            k(f"v_mul_f32 v31, v21, v{q}")
            k("v_exp_f32 v30, v30")
            k("v_fract_f32 v31, v31")
            k(f"v_cos_f32 v{o}, v31")
            k(f"v_sin_f32 v{o+1}, v31")
            k("s_nop 0")
            k(f"v_mul_f32 v{o}, v{o}, v30")
            k(f"v_mul_f32 v{o+1}, v{o+1}, v30")
        k("v_mul_f32 v32, v22, v28")
        k("v_fma_f32 v32, -v23, v29, v32")
        k("v_mul_f32 v33, v22, v29")
        k("v_fma_f32 v33, v23, v28, v33")
        k("v_mov_b32 v34, 1.0")
        k("v_mov_b32 v35, 0")
        k("v_sub_f32 v25, 0, v25")
        XP = [(32, 33), (36, 37)]
        YP = [(34, 35), (38, 39)]
        for a in range(17):
            xr, xi = XP[a & 1]
            nxr, nxi = XP[1 - (a & 1)]
            yr, yi = YP[a & 1]
            nyr, nyi = YP[1 - (a & 1)]
            k(f"ds_write_b64 v16, v[{xr}:{xi}] offset:{a*RS}")
            if a < 16:
                k(f"ds_write_b64 v16, v[{yr}:{yi}] offset:{(17+a)*RS}")
                k(f"v_mul_f32 v{nxr}, v{xr}, v26")
                k(f"v_mul_f32 v{nxi}, v{xr}, v27")
                k(f"v_mul_f32 v{nyr}, v{yr}, v24")
                k(f"v_mul_f32 v{nyi}, v{yr}, v25")
                k(f"v_fma_f32 v{nxr}, -v{xi}, v27, v{nxr}")
                k(f"v_fma_f32 v{nxi}, v{xi}, v26, v{nxi}")
                k(f"v_fma_f32 v{nyr}, -v{yi}, v25, v{nyr}")
                k(f"v_fma_f32 v{nyi}, v{yi}, v24, v{nyi}")
        if ps == 0:
            stamp(k, 2, "kg")
        k("s_waitcnt lgkmcnt(0)")
        if ps == 0:
            stamp(k, 3, "kg")
        for g in range(8):
            fa = 64 + 8 * g
            k(f"ds_read_b128 v[{fa}:{fa+3}], v17 offset:{64*g}")
            k(f"ds_read_b128 v[{fa+4}:{fa+7}], v17 offset:{64*g+17*RS}")
        for g in range(8):
            fa = 64 + 8 * g
            k(f"s_waitcnt lgkmcnt({14-2*g})")
            for j in range(4):
                k(f"v_mfma_f32_16x16x4_f32 v[{ACC}:{ACC+3}], v{fa+j}, v{fa+4+j}, v[{ACC}:{ACC+3}]")
        k("s_nop 7")
    k("s_nop 15")
    stamp(k, 5, "kg")
    k("s_lshl_b32 s49, s44, 7")
    k("s_add_u32 s49, s49, 128")
    k("s_cmp_eq_u32 s44, 0")
    k("s_cselect_b32 s49, 0, s49")
    k("s_cselect_b32 s50, 16, 8")
    k("s_cmp_eq_u32 s44, 3")
    k("s_cselect_b32 s50, 9, s50")
    k("s_mul_i32 s51, s3, %d" % (KU_STRIDE * 4))
    k("s_lshl_b32 s49, s49, 2")
    k("s_add_u32 s51, s51, s49")
    k(f"s_add_u32 s51, s51, {WS_K}")
    k("v_and_b32 v20, 15, v1")
    k("v_lshlrev_b32 v21, 2, v18")
    k("v_lshlrev_b32 v22, 6, v21")
    k("v_lshl_add_u32 v22, v20, 2, v22")
    for r in range(4):
        k(f"v_add_u32 v23, {r}, v21")
        k("v_cmp_gt_u32 vcc, s50, v23")
        k("s_and_saveexec_b64 s[52:53], vcc")
        k(f"buffer_store_dword v{ACC+r}, v22, s[36:39], s51 offen offset:{64*r}")
        k("s_mov_b64 exec, s[52:53]")


def role_ln(k):
    NR = 8
    k("s_load_dwordx2 s[4:5], s[0:1], 0")
    k("s_load_dwordx2 s[6:7], s[0:1], 112")
    k("v_and_b32 v1, 63, v0")
    k("v_lshrrev_b32 v2, 6, v0")
    k("s_nop 0")
    k("v_readfirstlane_b32 s20, v2")
    k("s_waitcnt lgkmcnt(0)")
    srd(k, 8, 4, L * D * 2)
    srd(k, 12, 6, 0x10000000)
    k("s_lshl_b32 s21, s3, 5")
    k("s_lshl_b32 s22, s20, 3")
    k("s_add_u32 s21, s21, s22")
    k("s_mul_i32 s23, s21, 896")
    k("s_mov_b32 s25, s23")
    k("v_lshlrev_b32 v3, 4, v1")
    k("v_mov_b32 v4, 0x7ff00000")
    k("v_cmp_gt_u32 vcc, 56, v1")
    k("s_nop 1")
    k("v_cndmask_b32 v3, v4, v3, vcc")
    k("s_mov_b64 s[26:27], vcc")
    for i in range(NR):
        k(f"buffer_load_dwordx4 v[{16+4*i}:{19+4*i}], v3, s[8:11], s23 offen")
        k("s_add_u32 s23, s23, 896")
    k("v_lshlrev_b32 v5, 4, v1")
    k("s_mul_i32 s28, s20, %d" % (NR * 912))
    k("v_add_u32 v5, s28, v5")
    V = 48
    S = 112
    k("s_waitcnt vmcnt(0)")
    for i in range(NR):
        for j in range(4):
            k(f"v_lshlrev_b32 v{V+8*i+2*j}, 16, v{16+4*i+j}")
            k(f"v_and_b32 v{V+8*i+2*j+1}, 0xffff0000, v{16+4*i+j}")
    for i in range(NR):
        b = V + 8 * i
        k(f"v_add_f32 v{S+i}, v{b}, v{b+1}")
        for j in range(2, 8):
            k(f"v_add_f32 v{S+i}, v{S+i}, v{b+j}")

    def reduce_all(base):
        for sh in ("row_shr:1", "row_shr:2", "row_shr:4", "row_shr:8"):
            k("s_nop 1")
            for i in range(NR):
                k(f"v_add_f32_dpp v{base+i}, v{base+i}, v{base+i} {sh} row_mask:0xf bank_mask:0xf bound_ctrl:0")
        k("s_nop 1")
        for i in range(NR):
            k(f"v_add_f32_dpp v{base+i}, v{base+i}, v{base+i} row_bcast:15 row_mask:0xa bank_mask:0xf")
        k("s_nop 1")
        for i in range(NR):
            k(f"v_add_f32_dpp v{base+i}, v{base+i}, v{base+i} row_bcast:31 row_mask:0xc bank_mask:0xf")
        k("s_nop 1")
        for i in range(NR):
            k(f"v_readlane_b32 s{30+i}, v{base+i}, 63")
        k("s_nop 1")

    reduce_all(S)
    k("v_mov_b32 v6, 0x3b124925")
    for i in range(NR):
        k(f"v_mul_f32 v{S+8+i}, s{30+i}, v6")
        k(f"v_mov_b32 v{S+i}, 0")
    for j in range(8):
        for i in range(NR):
            k(f"v_sub_f32 v7, v{V+8*i+j}, v{S+8+i}")
            k(f"v_fma_f32 v{S+i}, v7, v7, v{S+i}")
    for i in range(NR):
        k(f"v_cndmask_b32 v{S+i}, 0, v{S+i}, s[26:27]")
    reduce_all(S)
    for i in range(NR):
        k(f"v_mul_f32 v{S+i}, s{30+i}, v6")
        k(f"v_cvt_pk_bf16_f32 v7, v{S+8+i}, v{S+i}")
        k(f"v_lshlrev_b32 v{S+8+i}, 16, v7")
        k(f"v_and_b32 v{S+i}, 0xffff0000, v7")
        k(f"v_add_f32 v{S+i}, 0x3727c5ac, v{S+i}")
        k(f"v_cvt_pk_bf16_f32 v7, v{S+i}, v{S+i}")
        k(f"v_lshlrev_b32 v{S+i}, 16, v7")
        k(f"v_sqrt_f32 v{S+i}, v{S+i}")
    for i in range(NR):
        k(f"v_cvt_pk_bf16_f32 v7, v{S+i}, v{S+i}")
        k(f"v_lshlrev_b32 v{S+i}, 16, v7")
        k(f"v_rcp_f32 v{S+16+i}, v{S+i}")
    for i in range(NR):
        b = V + 8 * i
        for j in range(4):
            k(f"v_sub_f32 v{b+2*j}, v{b+2*j}, v{S+8+i}")
            k(f"v_sub_f32 v{b+2*j+1}, v{b+2*j+1}, v{S+8+i}")
            k(f"v_cvt_pk_bf16_f32 v7, v{b+2*j}, v{b+2*j+1}")
            k(f"v_lshlrev_b32 v{b+2*j}, 16, v7")
            k(f"v_and_b32 v{b+2*j+1}, 0xffff0000, v7")
        for j in range(8):
            k(f"v_mul_f32 v8, v{b+j}, v{S+16+i}")
            k(f"v_fma_f32 v9, -v8, v{S+i}, v{b+j}")
            k(f"v_fma_f32 v{b+j}, v9, v{S+16+i}, v8")
        for j in range(4):
            k(f"v_cvt_pk_bf16_f32 v{16+4*i+j}, v{b+2*j}, v{b+2*j+1}")
        k(f"buffer_store_dwordx4 v[{16+4*i}:{19+4*i}], v3, s[12:15], s25 offen")
        k("s_add_u32 s25, s25, 896")
    k("s_mov_b64 exec, s[26:27]")
    for i in range(NR):
        k(f"ds_write_b128 v5, v[{16+4*i}:{19+4*i}] offset:{i*912}")
    k("s_mov_b64 exec, -1")
    k("s_waitcnt lgkmcnt(0)")
    k("s_barrier")
    k("v_and_b32 v6, 3, v0")
    k("v_lshrrev_b32 v7, 2, v0")
    k("v_mul_u32_u24 v8, 8*912, v6")
    k("v_lshl_add_u32 v8, v7, 1, v8")
    k("v_lshlrev_b32 v9, 12, v7")
    k("v_lshl_add_u32 v9, v6, 4, v9")
    k("s_lshl_b32 s29, s3, 6")
    k(f"s_add_u32 s29, s29, {WS_XNT}")
    for kk in range(7):
        for e in range(8):
            k(f"ds_read_u16 v{24+e}, v8 offset:{e*912+128*kk}")
        k("s_waitcnt lgkmcnt(0)")
        for e in range(4):
            k(f"v_lshl_or_b32 v{16+e}, v{25+2*e}, 16, v{24+2*e}")
        k("buffer_store_dwordx4 v[16:19], v9, s[12:15], s29 offen")
        k("s_add_u32 s29, s29, 262144")
        k("s_nop 1")


def role_tr(k):
    k("s_load_dwordx2 s[4:5], s[0:1], 64")
    k("s_load_dwordx2 s[16:17], s[0:1], 80")
    k("s_load_dwordx2 s[6:7], s[0:1], 112")
    k("s_waitcnt lgkmcnt(0)")
    srd(k, 12, 6, 0x10000000)
    k("s_cmp_ge_u32 s3, 196")
    k("s_cbranch_scc1 L_tr_w2")
    k("s_mul_hi_u32 s20, s3, 153391690")
    k("s_mul_i32 s21, s20, 28")
    k("s_sub_u32 s21, s3, s21")
    k("s_mov_b32 s22, 3584")
    k("s_mov_b32 s23, 896")
    k(f"s_mov_b32 s24, {WS_W1T}")
    k("s_branch L_tr_go")
    k.label("L_tr_w2")
    k("s_sub_u32 s25, s3, 196")
    k("s_mul_hi_u32 s20, s25, 613566757")
    k("s_mul_i32 s21, s20, 7")
    k("s_sub_u32 s21, s25, s21")
    k("s_mov_b32 s4, s16")
    k("s_mov_b32 s5, s17")
    k("s_mov_b32 s22, 896")
    k("s_mov_b32 s23, 3584")
    k(f"s_mov_b32 s24, {WS_W2T}")
    k.label("L_tr_go")
    srd(k, 8, 4, D * F * 2)
    k("s_lshl_b32 s26, s20, 6")
    k("s_mul_i32 s26, s26, s22")
    k("s_lshl_b32 s27, s21, 7")
    k("s_add_u32 s26, s26, s27")
    k("s_lshl_b32 s27, s21, 6")
    k("s_mul_i32 s27, s27, s23")
    k("s_lshl_b32 s28, s20, 7")
    k("s_add_u32 s27, s27, s28")
    k("s_add_u32 s27, s27, s24")
    k("v_and_b32 v1, 7, v0")
    k("v_lshrrev_b32 v2, 3, v0")
    k("v_mul_lo_u32 v3, v2, s22")
    k("v_lshl_add_u32 v3, v1, 4, v3")
    k("s_lshl_b32 s29, s22, 5")
    k("s_add_u32 s29, s29, s26")
    k("buffer_load_dwordx4 v[8:11], v3, s[8:11], s26 offen")
    k("buffer_load_dwordx4 v[12:15], v3, s[8:11], s29 offen")
    k("v_mul_u32_u24 v4, 144, v2")
    k("v_lshl_add_u32 v4, v1, 4, v4")
    k("s_waitcnt vmcnt(1)")
    k("ds_write_b128 v4, v[8:11]")
    k("s_waitcnt vmcnt(0)")
    k("ds_write_b128 v4, v[12:15] offset:4608")
    k("s_waitcnt lgkmcnt(0)")
    k("s_barrier")
    k("v_mul_u32_u24 v5, 8*144, v1")
    k("v_lshl_add_u32 v5, v2, 1, v5")
    k("v_mul_lo_u32 v6, v2, s23")
    k("v_lshl_add_u32 v6, v1, 4, v6")
    k("s_lshl_b32 s29, s23, 5")
    k("s_add_u32 s29, s29, s27")
    for i in range(2):
        for e in range(8):
            k(f"ds_read_u16 v{16+8*i+e}, v5 offset:{e*144+64*i}")
    k("s_waitcnt lgkmcnt(0)")
    for i in range(2):
        for e in range(4):
            k(f"v_lshl_or_b32 v{8+4*i+e}, v{17+8*i+2*e}, 16, v{16+8*i+2*e}")
    k("buffer_store_dwordx4 v[8:11], v6, s[12:15], s27 offen")
    k("buffer_store_dwordx4 v[12:15], v6, s[12:15], s29 offen")


def gen_prep():
    k = Kern("prep_kernel", vgpr=256 if STAMPS else 136)
    k("s_cmp_ge_u32 s2, 448")
    k("s_cbranch_scc1 L_prep_b")
    role_kgen(k)
    k("s_endpgm")
    k.label("L_prep_b")
    k("s_sub_u32 s3, s2, 448")
    k("s_cmp_ge_u32 s3, 64")
    k("s_cbranch_scc1 L_prep_c")
    role_ln(k)
    k("s_endpgm")
    k.label("L_prep_c")
    k("s_sub_u32 s3, s3, 64")
    k("s_cmp_ge_u32 s3, 392")
    k("s_cbranch_scc1 L_prep_end")
    role_tr(k)
    k.label("L_prep_end")
    return k


def role_gemm1(k):
    k("s_load_dwordx2 s[4:5], s[0:1], 72")
    k("s_load_dwordx2 s[6:7], s[0:1], 112")
    k("s_mul_hi_u32 s20, s3, 306783379")
    k("s_mul_i32 s21, s20, 14")
    k("s_sub_u32 s21, s3, s21")
    k("v_and_b32 v1, 63, v0")
    k("v_lshrrev_b32 v2, 6, v0")
    k("s_nop 0")
    k("v_readfirstlane_b32 s22, v2")
    k("s_waitcnt lgkmcnt(0)")
    srd(k, 8, 4, F * 2)
    srd(k, 12, 6, 0x10000000)
    k("s_lshr_b32 s23, s22, 1")
    k("s_and_b32 s24, s22, 1")
    k("v_lshrrev_b32 v3, 3, v0")
    k("v_and_b32 v4, 7, v0")
    k("v_mul_u32_u24 v5, 896, v3")
    k("v_lshl_add_u32 v5, v4, 4, v5")
    k("s_mul_i32 s25, s20, 128*896")
    k("s_mul_i32 s26, s21, 128*896")
    k(f"s_add_u32 s26, s26, {WS_W1T}")
    for i in range(4):
        k(f"v_add_u32 v{6+i}, {i*28672}, v5")
    k("v_mul_u32_u24 v10, 144, v3")
    k("v_lshl_add_u32 v10, v4, 4, v10")
    k("v_add_u32 v80, 36864, v10")
    k("v_and_b32 v11, 31, v1")
    k("v_lshrrev_b32 v12, 5, v1")
    k("v_mul_u32_u24 v13, 144, v11")
    k("v_lshl_add_u32 v13, v12, 4, v13")
    k("s_mul_i32 s27, s23, 64*144")
    k("s_mul_i32 s28, s24, 64*144")
    k("s_add_u32 s28, s28, 18432")
    k("v_add_u32 v14, s27, v13")
    k("v_add_u32 v15, s28, v13")
    ACC = 96
    ST = [16, 160]

    def gload(kc):
        st = ST[kc & 1]
        k(f"s_add_u32 s29, s25, {kc*128}")
        k(f"s_add_u32 s30, s26, {kc*128}")
        for i in range(4):
            k(f"buffer_load_dwordx4 v[{st+4*i}:{st+4*i+3}], v{6+i}, s[12:15], s29 offen")
        for i in range(4):
            k(f"buffer_load_dwordx4 v[{st+16+4*i}:{st+16+4*i+3}], v{6+i}, s[12:15], s30 offen")

    def lwrite(kc, outstanding):
        st = ST[kc & 1]
        va = 80 if (kc & 1) else 10
        k(f"s_waitcnt vmcnt({outstanding})")
        for i in range(4):
            k(f"ds_write_b128 v{va}, v[{st+4*i}:{st+4*i+3}] offset:{i*4608}")
        for i in range(4):
            k(f"ds_write_b128 v{va}, v[{st+16+4*i}:{st+16+4*i+3}] offset:{18432+i*4608}")

    gload(0)
    gload(1)
    for r in range(64):
        k(f"v_mov_b32 v{ACC+r}, 0")
    lwrite(0, 8)
    k("s_waitcnt lgkmcnt(0)")
    k("s_barrier")
    FR = 48
    for kc in range(7):
        buf = kc & 1
        if kc + 2 < 7:
            gload(kc + 2)
        for ks in range(4):
            o = buf * 36864 + ks * 32
            f = 192 + 16 * ks
            k(f"ds_read_b128 v[{f}:{f+3}], v14 offset:{o}")
            k(f"ds_read_b128 v[{f+4}:{f+7}], v14 offset:{o+32*144}")
            k(f"ds_read_b128 v[{f+8}:{f+11}], v15 offset:{o}")
            k(f"ds_read_b128 v[{f+12}:{f+15}], v15 offset:{o+32*144}")
        for ks in range(4):
            f = 192 + 16 * ks
            k(f"s_waitcnt lgkmcnt({12-4*ks})")
            for mi in range(2):
                for ni in range(2):
                    a = ACC + 16 * (2 * mi + ni)
                    k(f"v_mfma_f32_32x32x16_bf16 v[{a}:{a+15}], v[{f+4*mi}:{f+4*mi+3}], v[{f+8+4*ni}:{f+8+4*ni+3}], v[{a}:{a+15}]")
        if kc < 6:
            lwrite(kc + 1, 8 if kc + 2 < 7 else 0)
        k("s_waitcnt lgkmcnt(0)")
        k("s_barrier")
    k("s_nop 15")
    k("s_nop 15")
    k("s_lshl_b32 s29, s21, 7")
    k("s_lshl_b32 s30, s24, 6")
    k("s_add_u32 s29, s29, s30")
    k("v_add_u32 v16, s29, v11")
    k("v_lshlrev_b32 v16, 1, v16")
    k("buffer_load_ushort v17, v16, s[8:11], 0 offen")
    k("buffer_load_ushort v18, v16, s[8:11], 0 offen offset:64")
    k("s_lshl_b32 s29, s20, 7")
    k("s_lshl_b32 s30, s23, 6")
    k("s_add_u32 s29, s29, s30")
    k("v_lshlrev_b32 v19, 2, v12")
    k("v_add_u32 v19, s29, v19")
    k("v_mul_u32_u24 v19, 3584, v19")
    k("v_add_u32 v19, v19, v16")
    k(f"v_add_u32 v19, {WS_H}, v19")
    k("s_waitcnt vmcnt(0)")
    k("v_lshlrev_b32 v17, 16, v17")
    k("v_lshlrev_b32 v18, 16, v18")
    for mi in range(2):
        for ni in range(2):
            for r in range(16):
                a = ACC + 16 * (2 * mi + ni) + r
                row = 32 * mi + 8 * (r >> 2) + (r & 3)
                k(f"v_cvt_pk_bf16_f32 v20, v{a}, v{a}")
                k("v_lshlrev_b32 v20, 16, v20")
                k(f"v_add_f32 v20, v20, v{17+ni}")
                k("v_cvt_pk_bf16_f32 v20, v20, v20")
                k("v_lshlrev_b32 v20, 16, v20")
                k("v_max_f32 v20, 0, v20")
                k("v_mul_f32 v20, v20, v20")
                k(f"v_cvt_pk_bf16_f32 v{a}, v20, v20")
                k(f"s_mov_b32 s29, {row*3584+64*ni}")
                k(f"buffer_store_short v{a}, v19, s[12:15], s29 offen")


def role_conv(k):
    ZS = 0
    CP = 8448
    stamp(k, 0, "conv")
    k("s_load_dwordx2 s[6:7], s[0:1], 112")
    k("v_and_b32 v1, 63, v0")
    k("v_lshrrev_b32 v2, 6, v0")
    k("s_nop 0")
    k("v_readfirstlane_b32 s22, v2")
    k("s_waitcnt lgkmcnt(0)")
    srd(k, 12, 6, 0x10000000)
    k("s_lshl_b32 s20, s3, 12")
    k(f"s_add_u32 s20, s20, {WS_XNT}")
    k("v_lshlrev_b32 v3, 4, v0")
    k("buffer_load_dwordx4 v[40:43], v3, s[12:15], s20 offen")
    k("s_mul_i32 s21, s3, %d" % (KU_STRIDE * 4))
    k(f"s_add_u32 s21, s21, {WS_K}")
    k("v_lshlrev_b32 v4, 3, v0")
    k("v_sub_u32 v4, 2047, v4")
    for e in range(8):
        k(f"v_subrev_u32 v5, {e}, v4")
        k("v_cvt_f32_u32 v5, v5")
        k("v_cvt_pk_bf16_f32 v5, v5, v5")
        k("v_lshlrev_b32 v5, 16, v5")
        k("v_cvt_u32_f32 v6, v5")
        k("v_lshrrev_b32 v5, 23, v5")
        k("v_subrev_u32 v5, 134, v5")
        k("v_max_i32 v5, 0, v5")
        k("v_lshrrev_b32 v6, v5, v6")
        k("v_lshl_add_u32 v6, v5, 7, v6")
        k("v_lshlrev_b32 v6, 2, v6")
        k(f"buffer_load_dword v{12+e}, v6, s[12:15], s21 offen")
    k("v_mov_b32 v20, 0")
    k("v_mov_b32 v21, 0")
    k("v_mov_b32 v22, 0")
    k("v_mov_b32 v23, 0")
    k("v_cmp_gt_u32 vcc, 6, v0")
    k("s_and_saveexec_b64 s[24:25], vcc")
    k(f"ds_write_b128 v3, v[20:23] offset:{ZS+4096}")
    k(f"ds_write_b128 v3, v[20:23] offset:{ZS+4224+4096}")
    k("s_mov_b64 exec, s[24:25]")
    k("v_lshrrev_b32 v5, 2, v0")
    k("v_and_b32 v6, 3, v0")
    k("v_mul_u32_u24 v5, 80, v5")
    k("v_lshl_add_u32 v5, v6, 4, v5")
    k("s_waitcnt vmcnt(0)")
    for p in range(4):
        a, b = 12 + 2 * p, 13 + 2 * p
        k(f"v_cvt_pk_bf16_f32 v{24+p}, v{a}, v{b}")
        k(f"v_lshlrev_b32 v28, 16, v{24+p}")
        k(f"v_and_b32 v29, 0xffff0000, v{24+p}")
        k(f"v_sub_f32 v28, v{a}, v28")
        k(f"v_sub_f32 v29, v{b}, v29")
        k(f"v_cvt_pk_bf16_f32 v{32+p}, v28, v29")
    k(f"ds_write_b128 v3, v[24:27] offset:{ZS}")
    k(f"ds_write_b128 v3, v[32:35] offset:{ZS+4224}")
    k("s_waitcnt lgkmcnt(0)")
    k("s_barrier")
    k("v_add_u32 v36, 33280, v3")
    for part in range(2):
        va = 36 if part else 3
        k(f"ds_read_b128 v[8:11], v3 offset:{ZS+part*4224}")
        k(f"ds_read_b128 v[12:15], v3 offset:{ZS+part*4224+16}")
        k("s_waitcnt lgkmcnt(0)")
        for s in range(8):
            if s % 2 == 0:
                base = 8 + s // 2
                if base % 2 == 0:
                    k(f"ds_write_b128 v{va}, v[{base}:{base+3}] offset:{CP+s*4160}")
                else:
                    for q in range(4):
                        k(f"v_mov_b32 v{16+q}, v{base+q}")
                    k(f"ds_write_b128 v{va}, v[16:19] offset:{CP+s*4160}")
            else:
                for q in range(4):
                    lo = 8 + q + (s - 1) // 2
                    k(f"v_alignbit_b32 v{16+q}, v{lo+1}, v{lo}, 16")
                k(f"ds_write_b128 v{va}, v[16:19] offset:{CP+s*4160}")
            k("s_nop 1")
    k("v_cmp_gt_u32 vcc, 4, v0")
    k("s_and_saveexec_b64 s[24:25], vcc")
    for part in range(2):
        for s in range(8):
            k(f"ds_write_b128 v{36 if part else 3}, v[20:23] offset:{CP+s*4160+4096}")
    k("s_mov_b64 exec, s[24:25]")
    k("s_waitcnt lgkmcnt(0)")
    k("s_barrier")
    k("v_cmp_gt_u32 vcc, 160, v0")
    k("s_and_saveexec_b64 s[24:25], vcc")
    k("ds_write_b128 v3, v[20:23]")
    k("s_mov_b64 exec, s[24:25]")
    k(f"ds_write_b128 v5, v[40:43] offset:{32*80}")
    k("s_waitcnt lgkmcnt(0)")
    k("s_barrier")
    k("s_and_b32 s23, s22, 1")
    k("s_lshr_b32 s24, s22, 1")
    k("v_and_b32 v4, 31, v1")
    k("v_lshrrev_b32 v5, 5, v1")
    k("v_sub_u32 v6, 7, v4")
    k("v_and_b32 v6, 7, v6")
    k("v_sub_u32 v7, 31, v4")
    k("v_lshl_add_u32 v7, v5, 3, v7")
    k("s_lshl_b32 s25, s23, 4")
    k("v_add_u32 v7, s25, v7")
    k("v_sub_u32 v7, v7, v6")
    k("v_lshlrev_b32 v7, 1, v7")
    k("v_mul_u32_u24 v8, 4160, v6")
    k("v_add_u32 v7, v7, v8")
    k("s_mul_i32 s25, s24, 33280")
    k(f"s_add_u32 s25, s25, {CP}")
    k("v_add_u32 v7, s25, v7")
    k("v_add_u32 v8, 1, v4")
    k("v_mul_u32_u24 v8, 80, v8")
    k("v_lshl_add_u32 v8, v5, 4, v8")
    k("s_lshl_b32 s25, s23, 5")
    k("v_add_u32 v8, s25, v8")
    A0, A1 = 64, 80
    for r in range(32):
        k(f"v_mov_b32 v{A0+r}, 0")
    FR = [16, 28]

    def reads(r):
        f = FR[r & 1]
        k(f"ds_read_b128 v[{f}:{f+3}], v7 offset:{64*(63-r)}")
        k(f"ds_read_b128 v[{f+4}:{f+7}], v8 offset:{80*(63-r)}")
        if r < 32:
            k(f"ds_read_b128 v[{f+8}:{f+11}], v8 offset:{80*(31-r)}")

    stamp(k, 1, "conv")
    reads(0)
    for r in range(64):
        f = FR[r & 1]
        if r < 63:
            reads(r + 1)
            k(f"s_waitcnt lgkmcnt({3 if r+1 < 32 else 2})")
        else:
            k("s_waitcnt lgkmcnt(0)")
        k(f"v_mfma_f32_32x32x16_bf16 v[{A1}:{A1+15}], v[{f+4}:{f+7}], v[{f}:{f+3}], v[{A1}:{A1+15}]")
        if r < 32:
            k(f"v_mfma_f32_32x32x16_bf16 v[{A0}:{A0+15}], v[{f+8}:{f+11}], v[{f}:{f+3}], v[{A0}:{A0+15}]")
    k("s_nop 15")
    k("s_nop 15")
    stamp(k, 2, "conv")
    k("s_barrier")
    k("s_lshl_b32 s25, s22, 13")
    k("v_lshlrev_b32 v9, 2, v1")
    k("v_add_u32 v10, s25, v9")
    for r in range(32):
        k(f"ds_write_b32 v10, v{A0+r} offset:{256*r}")
    k("s_waitcnt lgkmcnt(0)")
    k("s_barrier")
    k("s_lshl_b32 s25, s22, 11")
    k("v_add_u32 v10, s25, v9")
    for w in range(4):
        for q in range(8):
            k(f"ds_read_b32 v{16+8*w+q}, v10 offset:{8192*w+256*q}")
    k("s_waitcnt lgkmcnt(0)")
    for q in range(8):
        k(f"v_add_f32 v{16+q}, v{16+q}, v{24+q}")
        k(f"v_add_f32 v{32+q}, v{32+q}, v{40+q}")
        k(f"v_add_f32 v{16+q}, v{16+q}, v{32+q}")
        k(f"v_cvt_pk_bf16_f32 v{16+q}, v{16+q}, v{16+q}")
    k("s_lshl_b32 s25, s24, 11")
    k("s_lshl_b32 s26, s23, 10")
    k("s_add_u32 s25, s25, s26")
    k("s_lshl_b32 s26, s3, 12")
    k("s_add_u32 s25, s25, s26")
    k(f"s_add_u32 s25, s25, {WS_YT}")
    k("v_lshlrev_b32 v9, 8, v5")
    k("v_lshl_add_u32 v9, v4, 1, v9")
    for q in range(8):
        k(f"buffer_store_short v{16+q}, v9, s[12:15], s25 offen offset:{64*(8*(q>>2)+(q&3))}")
    k("s_waitcnt vmcnt(0)")
    stamp(k, 3, "conv")


def gen_mid():
    k = Kern("mid_kernel", vgpr=256)
    k("s_cmp_ge_u32 s2, 224")
    k("s_cbranch_scc1 L_mid_b")
    k("s_mov_b32 s3, s2")
    role_gemm1(k)
    k("s_endpgm")
    k.label("L_mid_b")
    k("s_sub_u32 s3, s2, 224")
    k("s_cmp_ge_u32 s3, 448")
    k("s_cbranch_scc1 L_mid_end")
    role_conv(k)
    k.label("L_mid_end")
    return k


def role_gemm2(k):
    k("s_load_dwordx2 s[4:5], s[0:1], 88")
    k("s_load_dwordx2 s[6:7], s[0:1], 112")
    k("s_lshr_b32 s21, s3, 3")
    k("s_mul_hi_u32 s20, s21, 613566757")
    k("s_mul_i32 s23, s20, 7")
    k("s_sub_u32 s21, s21, s23")
    k("s_lshl_b32 s20, s20, 3")
    k("s_and_b32 s23, s3, 7")
    k("s_add_u32 s20, s20, s23")
    k("v_and_b32 v1, 63, v0")
    k("v_lshrrev_b32 v2, 6, v0")
    k("s_nop 0")
    k("v_readfirstlane_b32 s22, v2")
    k("s_waitcnt lgkmcnt(0)")
    srd(k, 8, 4, D * 2)
    srd(k, 12, 6, 0x10000000)
    k("s_lshr_b32 s23, s22, 1")
    k("s_and_b32 s24, s22, 1")
    k("v_lshrrev_b32 v3, 4, v0")
    k("v_and_b32 v4, 15, v0")
    k("v_mul_u32_u24 v5, 3584, v3")
    k("v_lshl_add_u32 v5, v4, 4, v5")
    k("s_mul_i32 s25, s20, 64*3584")
    k(f"s_add_u32 s25, s25, {WS_H}")
    k("s_mul_i32 s26, s21, 64*3584")
    k(f"s_add_u32 s26, s26, {WS_W2T}")
    for i in range(4):
        k(f"v_add_u32 v{6+i}, {i*16*3584}, v5")
    k("v_mul_u32_u24 v10, 272, v3")
    k("v_lshl_add_u32 v10, v4, 4, v10")
    k("v_and_b32 v11, 31, v1")
    k("v_lshrrev_b32 v12, 5, v1")
    k("v_mul_u32_u24 v13, 272, v11")
    k("v_lshl_add_u32 v13, v12, 4, v13")
    k("s_mul_i32 s27, s23, 32*272")
    k("s_mul_i32 s28, s24, 32*272")
    k("s_add_u32 s28, s28, 17408")
    k("v_add_u32 v14, s27, v13")
    k("v_add_u32 v15, s28, v13")
    ACC = 64
    STS = [80, 112]

    def gload(kc):
        ST = STS[kc & 1]
        for i in range(4):
            k(f"buffer_load_dwordx4 v[{ST+4*i}:{ST+4*i+3}], v{6+i}, s[12:15], s25 offen")
        for i in range(4):
            k(f"buffer_load_dwordx4 v[{ST+16+4*i}:{ST+16+4*i+3}], v{6+i}, s[12:15], s26 offen")
        k("s_add_u32 s25, s25, 256")
        k("s_add_u32 s26, s26, 256")

    def lwrite(kc, outstanding):
        ST = STS[kc & 1]
        buf = kc & 1
        k(f"s_waitcnt vmcnt({outstanding})")
        for i in range(4):
            k(f"ds_write_b128 v10, v[{ST+4*i}:{ST+4*i+3}] offset:{buf*34816+i*16*272}")
        for i in range(4):
            k(f"ds_write_b128 v10, v[{ST+16+4*i}:{ST+16+4*i+3}] offset:{buf*34816+17408+i*16*272}")

    gload(0)
    gload(1)
    k("s_lshl_b32 s29, s21, 6")
    k("s_lshl_b32 s30, s24, 5")
    k("s_add_u32 s29, s29, s30")
    k("v_add_u32 v16, s29, v11")
    k("v_lshlrev_b32 v17, 1, v16")
    k("buffer_load_ushort v18, v17, s[8:11], 0 offen")
    k("s_lshl_b32 s29, s20, 6")
    k("s_lshl_b32 s30, s23, 5")
    k("s_add_u32 s29, s29, s30")
    k("v_lshlrev_b32 v20, 2, v12")
    k("v_add_u32 v20, s29, v20")
    k("v_mul_u32_u24 v22, 896, v20")
    k("v_add_u32 v22, v22, v17")
    k(f"v_add_u32 v22, {WS_G}, v22")
    NEPI = 1
    for r in range(16):
        k(f"v_mov_b32 v{ACC+r}, 0")
    lwrite(0, 8 + NEPI)
    k("s_waitcnt lgkmcnt(0)")
    k("s_barrier")
    for kc in range(14):
        buf = kc & 1
        if kc + 2 < 14:
            gload(kc + 2)
        for ks in range(8):
            o = buf * 34816 + ks * 32
            f = 144 + 8 * ks
            k(f"ds_read_b128 v[{f}:{f+3}], v14 offset:{o}")
            k(f"ds_read_b128 v[{f+4}:{f+7}], v15 offset:{o}")
        for ks in range(8):
            f = 144 + 8 * ks
            k(f"s_waitcnt lgkmcnt({14-2*ks})")
            k(f"v_mfma_f32_32x32x16_bf16 v[{ACC}:{ACC+15}], v[{f}:{f+3}], v[{f+4}:{f+7}], v[{ACC}:{ACC+15}]")
        if kc < 13:
            if kc == 0:
                lwrite(1, NEPI + 8)
            else:
                lwrite(kc + 1, 8 if kc + 2 < 14 else 0)
        k("s_waitcnt lgkmcnt(0)")
        k("s_barrier")
    k("s_nop 15")
    k("s_nop 15")
    k("v_lshlrev_b32 v18, 16, v18")
    for r in range(16):
        a = ACC + r
        row = 8 * (r >> 2) + (r & 3)
        yreg = 24 + 2 * (r >> 2) + ((r & 3) >> 1)
        k(f"v_cvt_pk_bf16_f32 v130, v{a}, v{a}")
        k("v_lshlrev_b32 v130, 16, v130")
        k("v_add_f32 v130, v130, v18")
        k("v_cvt_pk_bf16_f32 v130, v130, v130")
        k("v_lshlrev_b32 v130, 16, v130")
        k("v_mul_f32 v131, 0xbfb8aa3b, v130")
        k("v_exp_f32 v131, v131")
        k("s_nop 0")
        k("v_add_f32 v131, 1.0, v131")
        k("v_rcp_f32 v132, v131")
        k("s_nop 0")
        k("v_mul_f32 v133, v130, v132")
        k("v_fma_f32 v134, -v133, v131, v130")
        k("v_fma_f32 v133, v134, v132, v133")
        k(f"v_cvt_pk_bf16_f32 v{a}, v133, v133")
        k(f"s_mov_b32 s29, {row*896}")
        k(f"buffer_store_short v{a}, v22, s[12:15], s29 offen")


def gen_comb():
    k = Kern("comb_kernel", vgpr=96)
    k("s_cmp_ge_u32 s2, 224")
    k("s_cbranch_scc1 L_cb_end")
    k("s_load_dwordx2 s[4:5], s[0:1], 0")
    k("s_load_dwordx2 s[6:7], s[0:1], 112")
    k("s_load_dwordx2 s[16:17], s[0:1], 48")
    k("s_load_dwordx2 s[18:19], s[0:1], 96")
    k("s_mul_hi_u32 s20, s2, 613566757")
    k("s_mul_i32 s21, s20, 7")
    k("s_sub_u32 s21, s2, s21")
    k("v_and_b32 v1, 7, v0")
    k("v_lshrrev_b32 v2, 3, v0")
    k("s_waitcnt lgkmcnt(0)")
    srd(k, 8, 4, L * D * 2)
    srd(k, 12, 6, 0x10000000)
    srd(k, 24, 16, D * 2)
    srd(k, 28, 18, L * D * 2)
    k("s_lshl_b32 s22, s21, 18")
    k("s_lshl_b32 s23, s20, 7")
    k("s_add_u32 s22, s22, s23")
    k(f"s_add_u32 s22, s22, {WS_YT}")
    k("v_lshlrev_b32 v3, 12, v2")
    k("v_lshl_add_u32 v3, v1, 4, v3")
    k("s_add_u32 s23, s22, 131072")
    k("buffer_load_dwordx4 v[8:11], v3, s[12:15], s22 offen")
    k("buffer_load_dwordx4 v[12:15], v3, s[12:15], s23 offen")
    k("s_mul_i32 s32, s20, 64*896")
    k("s_lshl_b32 s33, s21, 7")
    k("s_add_u32 s32, s32, s33")
    k("v_mul_u32_u24 v4, 896, v2")
    k("v_lshl_add_u32 v4, v1, 4, v4")
    k("s_add_u32 s34, s32, 32*896")
    k(f"s_add_u32 s35, s32, {WS_G}")
    k(f"s_add_u32 s36, s34, {WS_G}")
    k("buffer_load_dwordx4 v[16:19], v4, s[8:11], s32 offen")
    k("buffer_load_dwordx4 v[20:23], v4, s[8:11], s34 offen")
    k("buffer_load_dwordx4 v[24:27], v4, s[12:15], s32 offen")
    k("buffer_load_dwordx4 v[28:31], v4, s[12:15], s34 offen")
    k("buffer_load_dwordx4 v[32:35], v4, s[12:15], s35 offen")
    k("buffer_load_dwordx4 v[36:39], v4, s[12:15], s36 offen")
    k("v_lshlrev_b32 v5, 4, v1")
    k("buffer_load_dwordx4 v[40:43], v5, s[24:27], s33 offen")
    k("v_mul_u32_u24 v6, 144, v2")
    k("v_lshl_add_u32 v6, v1, 4, v6")
    k("s_waitcnt vmcnt(8)")
    k("ds_write_b128 v6, v[8:11]")
    k("s_waitcnt vmcnt(7)")
    k("ds_write_b128 v6, v[12:15] offset:4608")
    k("s_waitcnt lgkmcnt(0)")
    k("s_barrier")
    k("v_mul_u32_u24 v7, 8*144, v1")
    k("v_lshl_add_u32 v7, v2, 1, v7")
    for i in range(2):
        for e in range(8):
            k(f"ds_read_u16 v{48+8*i+e}, v7 offset:{e*144+64*i}")
    k("s_waitcnt vmcnt(0) lgkmcnt(0)")
    for i in range(2):
        for e in range(8):
            q = e >> 1
            def half(dst, src):
                if e & 1:
                    k(f"v_and_b32 v{dst}, 0xffff0000, v{src}")
                else:
                    k(f"v_lshlrev_b32 v{dst}, 16, v{src}")
            half(64, 24 + 4 * i + q)
            half(65, 40 + q)
            k("v_mul_f32 v64, v64, v65")
            k("v_cvt_pk_bf16_f32 v64, v64, v64")
            k("v_lshlrev_b32 v64, 16, v64")
            k(f"v_lshlrev_b32 v65, 16, v{48+8*i+e}")
            k("v_add_f32 v64, v64, v65")
            k("v_cvt_pk_bf16_f32 v64, v64, v64")
            k("v_lshlrev_b32 v64, 16, v64")
            half(65, 32 + 4 * i + q)
            k("v_mul_f32 v64, v64, v65")
            k("v_cvt_pk_bf16_f32 v64, v64, v64")
            k("v_lshlrev_b32 v64, 16, v64")
            half(65, 16 + 4 * i + q)
            k(f"v_add_f32 v{70+e}, v64, v65")
        for q in range(4):
            k(f"v_cvt_pk_bf16_f32 v{80+4*i+q}, v{70+2*q}, v{71+2*q}")
    k("buffer_store_dwordx4 v[80:83], v4, s[28:31], s32 offen")
    k("buffer_store_dwordx4 v[84:87], v4, s[28:31], s34 offen")
    k.label("L_cb_end")
    return k


def dispatch(name, roles, vgpr):
    k = Kern(name, vgpr=vgpr)
    base = 0
    for i, (cnt, fn) in enumerate(roles):
        nxt = f"L_{name}_r{i}"
        k(f"s_sub_u32 s3, s2, {base}")
        k(f"s_cmp_ge_u32 s3, {cnt}")
        k(f"s_cbranch_scc1 {nxt}")
        fn(k)
        k("s_endpgm")
        k.label(nxt)
        base += cnt
    return k, base


def gen_gemm2():
    k = Kern("gemm2_kernel", vgpr=256)
    k("s_cmp_ge_u32 s2, 224")
    k("s_cbranch_scc1 L_g2_end")
    k("s_mov_b32 s3, s2")
    k("s_load_dwordx2 s[4:5], s[0:1], 88")
    k("s_load_dwordx2 s[6:7], s[0:1], 112")
    k("s_load_dwordx2 s[16:17], s[0:1], 48")
    k("s_load_dwordx2 s[18:19], s[0:1], 0")
    k("s_load_dwordx2 s[32:33], s[0:1], 96")
    k("s_lshr_b32 s21, s2, 3")
    k("s_mul_hi_u32 s20, s21, 613566757")
    k("s_mul_i32 s23, s20, 7")
    k("s_sub_u32 s21, s21, s23")
    k("s_lshl_b32 s20, s20, 3")
    k("s_and_b32 s23, s2, 7")
    k("s_add_u32 s20, s20, s23")
    k("v_and_b32 v1, 63, v0")
    k("v_lshrrev_b32 v2, 6, v0")
    k("s_nop 0")
    k("v_readfirstlane_b32 s22, v2")
    k("s_waitcnt lgkmcnt(0)")
    srd(k, 8, 4, D * 2)
    srd(k, 12, 6, 0x10000000)
    srd(k, 36, 16, D * 2)
    srd(k, 40, 18, L * D * 2)
    srd(k, 44, 32, L * D * 2)
    k("s_lshr_b32 s23, s22, 1")
    k("s_and_b32 s24, s22, 1")
    k("v_lshrrev_b32 v3, 4, v0")
    k("v_and_b32 v4, 15, v0")
    k("v_mul_u32_u24 v5, 3584, v3")
    k("v_lshl_add_u32 v5, v4, 4, v5")
    k("s_mul_i32 s25, s20, 64*3584")
    k(f"s_add_u32 s25, s25, {WS_H}")
    k("s_mul_i32 s26, s21, 64*3584")
    k(f"s_add_u32 s26, s26, {WS_W2T}")
    for i in range(4):
        k(f"v_add_u32 v{6+i}, {i*16*3584}, v5")
    k("v_mul_u32_u24 v10, 272, v3")
    k("v_lshl_add_u32 v10, v4, 4, v10")
    k("v_and_b32 v11, 31, v1")
    k("v_lshrrev_b32 v12, 5, v1")
    k("v_mul_u32_u24 v13, 272, v11")
    k("v_lshl_add_u32 v13, v12, 4, v13")
    k("s_mul_i32 s27, s23, 32*272")
    k("s_mul_i32 s28, s24, 32*272")
    k("s_add_u32 s28, s28, 17408")
    k("v_add_u32 v14, s27, v13")
    k("v_add_u32 v15, s28, v13")
    ACC = 64
    STS = [80, 112]

    def gload(kc):
        ST = STS[kc & 1]
        for i in range(4):
            k(f"buffer_load_dwordx4 v[{ST+4*i}:{ST+4*i+3}], v{6+i}, s[12:15], s25 offen")
        for i in range(4):
            k(f"buffer_load_dwordx4 v[{ST+16+4*i}:{ST+16+4*i+3}], v{6+i}, s[12:15], s26 offen")
        k("s_add_u32 s25, s25, 256")
        k("s_add_u32 s26, s26, 256")

    def lwrite(kc, outstanding):
        ST = STS[kc & 1]
        buf = kc & 1
        k(f"s_waitcnt vmcnt({outstanding})")
        for i in range(4):
            k(f"ds_write_b128 v10, v[{ST+4*i}:{ST+4*i+3}] offset:{buf*34816+i*16*272}")
        for i in range(4):
            k(f"ds_write_b128 v10, v[{ST+16+4*i}:{ST+16+4*i+3}] offset:{buf*34816+17408+i*16*272}")

    gload(0)
    gload(1)
    k("s_lshl_b32 s29, s21, 6")
    k("s_lshl_b32 s30, s24, 5")
    k("s_add_u32 s29, s29, s30")
    k("v_add_u32 v16, s29, v11")
    k("v_lshlrev_b32 v17, 1, v16")
    k("buffer_load_ushort v18, v17, s[8:11], 0 offen")
    k("buffer_load_ushort v19, v17, s[36:39], 0 offen")
    k("s_lshl_b32 s29, s20, 6")
    k("s_lshl_b32 s30, s23, 5")
    k("s_add_u32 s29, s29, s30")
    k("v_lshlrev_b32 v20, 2, v12")
    k("v_add_u32 v20, s29, v20")
    k("v_lshlrev_b32 v21, 12, v16")
    k("v_lshl_add_u32 v21, v20, 1, v21")
    k(f"v_add_u32 v21, {WS_YT}, v21")
    for q in range(4):
        k(f"buffer_load_dwordx2 v[{24+2*q}:{25+2*q}], v21, s[12:15], 0 offen offset:{16*q}")
    k("v_mul_u32_u24 v22, 896, v20")
    k("v_add_u32 v22, v22, v17")
    for r in range(16):
        row = 8 * (r >> 2) + (r & 3)
        k(f"s_mov_b32 s29, {row*896}")
        k(f"buffer_load_ushort v{32+r}, v22, s[12:15], s29 offen")
        k(f"buffer_load_ushort v{48+r}, v22, s[40:43], s29 offen")
    NEPI = 38
    for r in range(16):
        k(f"v_mov_b32 v{ACC+r}, 0")
    lwrite(0, 8 + NEPI)
    k("s_waitcnt lgkmcnt(0)")
    k("s_barrier")
    for kc in range(14):
        buf = kc & 1
        if kc + 2 < 14:
            gload(kc + 2)
        for ks in range(8):
            o = buf * 34816 + ks * 32
            f = 144 + 8 * ks
            k(f"ds_read_b128 v[{f}:{f+3}], v14 offset:{o}")
            k(f"ds_read_b128 v[{f+4}:{f+7}], v15 offset:{o}")
        for ks in range(8):
            f = 144 + 8 * ks
            k(f"s_waitcnt lgkmcnt({14-2*ks})")
            k(f"v_mfma_f32_32x32x16_bf16 v[{ACC}:{ACC+15}], v[{f}:{f+3}], v[{f+4}:{f+7}], v[{ACC}:{ACC+15}]")
        if kc < 13:
            if kc == 0:
                lwrite(1, NEPI + 8)
            else:
                lwrite(kc + 1, 8 if kc + 2 < 14 else 0)
        k("s_waitcnt lgkmcnt(0)")
        k("s_barrier")
    k("s_nop 15")
    k("s_nop 15")
    k("v_lshlrev_b32 v18, 16, v18")
    k("v_lshlrev_b32 v19, 16, v19")
    for r in range(16):
        a = ACC + r
        row = 8 * (r >> 2) + (r & 3)
        yreg = 24 + 2 * (r >> 2) + ((r & 3) >> 1)
        k(f"v_cvt_pk_bf16_f32 v130, v{a}, v{a}")
        k("v_lshlrev_b32 v130, 16, v130")
        k("v_add_f32 v130, v130, v18")
        k("v_cvt_pk_bf16_f32 v130, v130, v130")
        k("v_lshlrev_b32 v130, 16, v130")
        k("v_mul_f32 v131, 0xbfb8aa3b, v130")
        k("v_exp_f32 v131, v131")
        k("s_nop 0")
        k("v_add_f32 v131, 1.0, v131")
        k("v_rcp_f32 v132, v131")
        k("s_nop 0")
        k("v_mul_f32 v133, v130, v132")
        k("v_fma_f32 v134, -v133, v131, v130")
        k("v_fma_f32 v133, v134, v132, v133")
        k("v_cvt_pk_bf16_f32 v133, v133, v133")
        k("v_lshlrev_b32 v133, 16, v133")
        k(f"v_lshlrev_b32 v134, 16, v{32+r}")
        k("v_mul_f32 v134, v134, v19")
        k("v_cvt_pk_bf16_f32 v134, v134, v134")
        k("v_lshlrev_b32 v134, 16, v134")
        if r & 1:
            k(f"v_and_b32 v135, 0xffff0000, v{yreg}")
        else:
            k(f"v_lshlrev_b32 v135, 16, v{yreg}")
        k("v_add_f32 v134, v134, v135")
        k("v_cvt_pk_bf16_f32 v134, v134, v134")
        k("v_lshlrev_b32 v134, 16, v134")
        k("v_mul_f32 v134, v134, v133")
        k("v_cvt_pk_bf16_f32 v134, v134, v134")
        k("v_lshlrev_b32 v134, 16, v134")
        k(f"v_lshlrev_b32 v135, 16, v{48+r}")
        k("v_add_f32 v134, v134, v135")
        k(f"v_cvt_pk_bf16_f32 v{a}, v134, v134")
        k(f"s_mov_b32 s29, {row*896}")
        k(f"buffer_store_short v{a}, v22, s[44:47], s29 offen")
    k.label("L_g2_end")
    return k


def build():
    k0, n0 = dispatch("prep_kernel", [(448, role_kgen), (64, role_ln), (392, role_tr)], 136)
    k1, n1 = dispatch("mid_kernel", [(224, role_gemm1), (448, role_conv)], 256)
    kernels = [k0, k1, gen_gemm2()]
    launches = [
        ("prep_kernel", n0, 256, 4 * 33 * 528),
        ("mid_kernel", n1, 256, 8448 + 66560),
        ("gemm2_kernel", 224, 256, 69632),
    ]
    hdr = open("recurrent_scan__ssm_conv_s4d__dense_activation_squared_relu__prompt.s.ref").read().split("\n")
    head = [l for l in hdr if l.startswith(";") and "@launch" not in l and "Override" not in l and "grid=ceil" not in l]
    out = head[:]
    for (n, g, b, lds) in launches:
        out.append(f"; @launch kernel={n} grid=({g},1,1) block=({b},1,1) lds={lds}")
    out.append('.amdgcn_target "amdgcn-amd-amdhsa--gfx950"')
    for kk in kernels:
        out.append(kk.text())
    for kk in kernels:
        out.append(kk.desc())
    return "\n".join(out) + "\n"


if __name__ == "__main__":
    dst = sys.argv[1] if len(sys.argv) > 1 else "recurrent_scan__ssm_conv_s4d__dense_activation_squared_relu__prompt.s"
    open(dst, "w").write(build())
    print("wrote", dst)
```

```python
import sys

MB = 1 << 20
WS_XN = 0
WS_XNT = 2 * MB
WS_W1T = 4 * MB
WS_W2T = 6 * MB
WS_K = 8 * MB
WS_H = 16 * MB
WS_YT = 24 * MB
WS_G = 28 * MB

L, D, N, F = 2048, 448, 256, 1792


class Kern:
    def __init__(self, name, vgpr=256, sgpr=102):
        self.name = name
        self.lines = []
        self.vgpr = vgpr
        self.sgpr = sgpr
        self.uid = 0

    def __call__(self, s):
        for ln in s.strip("\n").split("\n"):
            self.lines.append("    " + ln.strip())

    def label(self, l):
        self.lines.append(l + ":")

    def newlabel(self, base):
        self.uid += 1
        return f"L_{self.name}_{base}_{self.uid}"

    def text(self):
        out = [".text", f".globl {self.name}", ".p2align 8", f".type {self.name},@function", f"{self.name}:"]
        out += self.lines
        out += ["    s_endpgm"]
        return "\n".join(out)

    def desc(self):
        acc = (self.vgpr + 3) // 4 * 4
        return f""".section .rodata,"a"
.p2align 6
.amdhsa_kernel {self.name}
  .amdhsa_next_free_vgpr {self.vgpr}
  .amdhsa_next_free_sgpr {self.sgpr}
  .amdhsa_accum_offset {acc}
  .amdhsa_group_segment_fixed_size 0
  .amdhsa_kernarg_size 120
  .amdhsa_user_sgpr_count 2
  .amdhsa_user_sgpr_kernarg_segment_ptr 1
  .amdhsa_system_sgpr_workgroup_id_x 1
.end_amdhsa_kernel"""


import os
STAMPS = os.environ.get("STAMPS", "")


def stamp(k, idx, tag):
    if tag not in STAMPS:
        return
    lab = k.newlabel("st")
    k("s_memtime s[90:91]")
    k("s_load_dwordx2 s[92:93], s[0:1], 104")
    k("s_waitcnt lgkmcnt(0)")
    k("s_cmp_lg_u32 s3, 5")
    k(f"s_cbranch_scc1 {lab}")
    k("v_cmp_eq_u32 vcc, 0, v0")
    k("s_and_saveexec_b64 s[94:95], vcc")
    k(f"s_cbranch_execz {lab}x")
    k("v_mov_b32 v254, s90")
    k("v_mov_b32 v255, 0")
    k(f"global_store_dword v255, v254, s[92:93] offset:{4*idx}")
    k.label(lab + "x")
    k("s_mov_b64 exec, s[94:95]")
    k.label(lab)


def srd(k, s, base_s, nbytes):
    k(f"s_mov_b32 s{s}, s{base_s}")
    k(f"s_and_b32 s{s+1}, s{base_s+1}, 0xffff")
    k(f"s_mov_b32 s{s+2}, {nbytes}")
    k(f"s_mov_b32 s{s+3}, 0x00020000")


def wave_reduce(k, r, sdst):
    for sh in (1, 2, 4, 8):
        k("s_nop 1")
        k(f"v_add_f32_dpp v{r}, v{r}, v{r} row_shr:{sh} row_mask:0xf bank_mask:0xf bound_ctrl:0")
    k("s_nop 1")
    k(f"v_add_f32_dpp v{r}, v{r}, v{r} row_bcast:15 row_mask:0xa bank_mask:0xf")
    k("s_nop 1")
    k(f"v_add_f32_dpp v{r}, v{r}, v{r} row_bcast:31 row_mask:0xc bank_mask:0xf")
    k("s_nop 1")
    k(f"v_readlane_b32 s{sdst}, v{r}, 63")
    k("s_nop 1")


def fdiv(k, dst, num, den, t0, t1):
    k(f"v_rcp_f32 v{t0}, v{den}")
    k("s_nop 0")
    k(f"v_mul_f32 v{dst}, v{num}, v{t0}")
    k(f"v_fma_f32 v{t1}, -v{dst}, v{den}, v{num}")
    k(f"v_fma_f32 v{dst}, v{t1}, v{t0}, v{dst}")


KU_STRIDE = 704


def role_kgen(k):
    RS = 528
    WREG = 33 * RS
    stamp(k, 0, "kg")
    k("s_load_dwordx8 s[4:11], s[0:1], 8")
    k("s_load_dwordx2 s[12:13], s[0:1], 40")
    k("s_load_dwordx2 s[14:15], s[0:1], 112")
    k("v_and_b32 v1, 63, v0")
    k("v_lshrrev_b32 v2, 6, v0")
    k("s_nop 0")
    k("v_readfirstlane_b32 s44, v2")
    k("s_waitcnt lgkmcnt(0)")
    srd(k, 16, 4, D * N * 2)
    srd(k, 20, 6, D * N * 2)
    srd(k, 24, 8, D * N * 2)
    srd(k, 28, 10, D * N * 2)
    srd(k, 32, 12, D * 2)
    srd(k, 36, 14, 0x10000000)
    k("s_lshl_b32 s40, s3, 9")
    k("s_lshl_b32 s41, s3, 1")
    k("v_lshlrev_b32 v3, 3, v1")
    k("v_mov_b32 v2, 0")
    k("buffer_load_dwordx2 v[4:5], v3, s[16:19], s40 offen")
    k("buffer_load_dwordx2 v[6:7], v3, s[20:23], s40 offen")
    k("buffer_load_dwordx2 v[8:9], v3, s[24:27], s40 offen")
    k("buffer_load_dwordx2 v[10:11], v3, s[28:31], s40 offen")
    k("buffer_load_ushort v12, v2, s[32:35], s41 offen")
    k("s_lshl_b32 s45, 1, s44")
    k("s_lshl_b32 s46, 16, s44")
    k("s_lshl_b32 s47, 128, s44")
    k("s_cmp_eq_u32 s44, 0")
    k("s_cselect_b32 s47, 0, s47")
    k("v_cvt_f32_u32 v13, s45")
    k("v_cvt_f32_u32 v14, s46")
    k("v_cvt_f32_u32 v15, s47")
    k("s_mul_i32 s48, s44, %d" % WREG)
    k("v_lshlrev_b32 v16, 3, v1")
    k("v_add_u32 v16, s48, v16")
    k("v_and_b32 v17, 15, v1")
    k("v_lshrrev_b32 v18, 4, v1")
    k("v_mul_u32_u24 v17, %d, v17" % RS)
    k("v_lshl_add_u32 v17, v18, 4, v17")
    k("v_add_u32 v17, s48, v17")
    ACC = 60
    for r in range(4):
        k(f"v_mov_b32 v{ACC+r}, 0")
    k("s_waitcnt vmcnt(0)")
    k("v_lshlrev_b32 v12, 16, v12")
    k("v_mov_b32 v19, 0x3fb8aa3b")
    k("v_mul_f32 v12, v12, v19")
    k("v_exp_f32 v12, v12")
    k("s_nop 0")
    k("v_cvt_pk_bf16_f32 v12, v12, v12")
    k("v_lshlrev_b32 v12, 16, v12")
    stamp(k, 1, "kg")
    for ps in range(4):
        if ps == 1:
            stamp(k, 4, "kg")
        for (src, dst) in ((4, 20), (6, 21), (8, 22), (10, 23)):
            rr = src + (ps >> 1)
            if ps & 1:
                k(f"v_and_b32 v{dst}, 0xffff0000, v{rr}")
            else:
                k(f"v_lshlrev_b32 v{dst}, 16, v{rr}")
        k("v_mul_f32 v20, v20, v19")
        k("v_exp_f32 v20, v20")
        k("s_nop 0")
        k("v_cvt_pk_bf16_f32 v20, v20, v20")
        k("v_lshlrev_b32 v20, 16, v20")
        k("v_mul_f32 v20, v20, v12")
        k("v_mul_f32 v20, v20, v19")
        k("v_sub_f32 v20, 0, v20")
        k("v_mul_f32 v21, v21, v12")
        k("v_mul_f32 v21, 0.15915494, v21")
        k("v_mul_f32 v22, v22, v12")
        k("v_mul_f32 v23, v23, v12")
        k("v_add_f32 v22, v22, v22")
        k("v_add_f32 v23, v23, v23")
        for (q, o) in ((13, 24), (14, 26), (15, 28)):
            k(f"v_mul_f32 v30, v20, v{q}")
            k(f"v_mul_f32 v31, v21, v{q}")
            k("v_exp_f32 v30, v30")
            k("v_fract_f32 v31, v31")
            k(f"v_cos_f32 v{o}, v31")
            k(f"v_sin_f32 v{o+1}, v31")
            k("s_nop 0")
            k(f"v_mul_f32 v{o}, v{o}, v30")
            k(f"v_mul_f32 v{o+1}, v{o+1}, v30")
        k("v_mul_f32 v32, v22, v28")
        k("v_fma_f32 v32, -v23, v29, v32")
        k("v_mul_f32 v33, v22, v29")
        k("v_fma_f32 v33, v23, v28, v33")
        k("v_mov_b32 v34, 1.0")
        k("v_mov_b32 v35, 0")
        k("v_sub_f32 v25, 0, v25")
        XP = [(32, 33), (36, 37)]
        YP = [(34, 35), (38, 39)]
        for a in range(17):
            xr, xi = XP[a & 1]
            nxr, nxi = XP[1 - (a & 1)]
            yr, yi = YP[a & 1]
            nyr, nyi = YP[1 - (a & 1)]
            k(f"ds_write_b64 v16, v[{xr}:{xi}] offset:{a*RS}")
            if a < 16:
                k(f"ds_write_b64 v16, v[{yr}:{yi}] offset:{(17+a)*RS}")
                k(f"v_mul_f32 v{nxr}, v{xr}, v26")
                k(f"v_mul_f32 v{nxi}, v{xr}, v27")
                k(f"v_mul_f32 v{nyr}, v{yr}, v24")
                k(f"v_mul_f32 v{nyi}, v{yr}, v25")
                k(f"v_fma_f32 v{nxr}, -v{xi}, v27, v{nxr}")
                k(f"v_fma_f32 v{nxi}, v{xi}, v26, v{nxi}")
                k(f"v_fma_f32 v{nyr}, -v{yi}, v25, v{nyr}")
                k(f"v_fma_f32 v{nyi}, v{yi}, v24, v{nyi}")
        if ps == 0:
            stamp(k, 2, "kg")
        k("s_waitcnt lgkmcnt(0)")
        if ps == 0:
            stamp(k, 3, "kg")
        for g in range(8):
            fa = 64 + 8 * g
            k(f"ds_read_b128 v[{fa}:{fa+3}], v17 offset:{64*g}")
            k(f"ds_read_b128 v[{fa+4}:{fa+7}], v17 offset:{64*g+17*RS}")
        for g in range(8):
            fa = 64 + 8 * g
            k(f"s_waitcnt lgkmcnt({14-2*g})")
            for j in range(4):
                k(f"v_mfma_f32_16x16x4_f32 v[{ACC}:{ACC+3}], v{fa+j}, v{fa+4+j}, v[{ACC}:{ACC+3}]")
        k("s_nop 7")
    k("s_nop 15")
    stamp(k, 5, "kg")
    k("s_lshl_b32 s49, s44, 7")
    k("s_add_u32 s49, s49, 128")
    k("s_cmp_eq_u32 s44, 0")
    k("s_cselect_b32 s49, 0, s49")
    k("s_cselect_b32 s50, 16, 8")
    k("s_cmp_eq_u32 s44, 3")
    k("s_cselect_b32 s50, 9, s50")
    k("s_mul_i32 s51, s3, %d" % (KU_STRIDE * 4))
    k("s_lshl_b32 s49, s49, 2")
    k("s_add_u32 s51, s51, s49")
    k(f"s_add_u32 s51, s51, {WS_K}")
    k("v_and_b32 v20, 15, v1")
    k("v_lshlrev_b32 v21, 2, v18")
    k("v_lshlrev_b32 v22, 6, v21")
    k("v_lshl_add_u32 v22, v20, 2, v22")
    for r in range(4):
        k(f"v_add_u32 v23, {r}, v21")
        k("v_cmp_gt_u32 vcc, s50, v23")
        k("s_and_saveexec_b64 s[52:53], vcc")
        k(f"buffer_store_dword v{ACC+r}, v22, s[36:39], s51 offen offset:{64*r}")
        k("s_mov_b64 exec, s[52:53]")


def role_ln(k):
    NR = 8
    k("s_load_dwordx2 s[4:5], s[0:1], 0")
    k("s_load_dwordx2 s[6:7], s[0:1], 112")
    k("v_and_b32 v1, 63, v0")
    k("v_lshrrev_b32 v2, 6, v0")
    k("s_nop 0")
    k("v_readfirstlane_b32 s20, v2")
    k("s_waitcnt lgkmcnt(0)")
    srd(k, 8, 4, L * D * 2)
    srd(k, 12, 6, 0x10000000)
    k("s_lshl_b32 s21, s3, 5")
    k("s_lshl_b32 s22, s20, 3")
    k("s_add_u32 s21, s21, s22")
    k("s_mul_i32 s23, s21, 896")
    k("s_mov_b32 s25, s23")
    k("v_lshlrev_b32 v3, 4, v1")
    k("v_mov_b32 v4, 0x7ff00000")
    k("v_cmp_gt_u32 vcc, 56, v1")
    k("s_nop 1")
    k("v_cndmask_b32 v3, v4, v3, vcc")
    k("s_mov_b64 s[26:27], vcc")
    for i in range(NR):
        k(f"buffer_load_dwordx4 v[{16+4*i}:{19+4*i}], v3, s[8:11], s23 offen")
        k("s_add_u32 s23, s23, 896")
    k("v_lshlrev_b32 v5, 4, v1")
    k("s_mul_i32 s28, s20, %d" % (NR * 912))
    k("v_add_u32 v5, s28, v5")
    V = 48
    S = 112
    k("s_waitcnt vmcnt(0)")
    for i in range(NR):
        for j in range(4):
            k(f"v_lshlrev_b32 v{V+8*i+2*j}, 16, v{16+4*i+j}")
            k(f"v_and_b32 v{V+8*i+2*j+1}, 0xffff0000, v{16+4*i+j}")
    for i in range(NR):
        b = V + 8 * i
        k(f"v_add_f32 v{S+i}, v{b}, v{b+1}")
        for j in range(2, 8):
            k(f"v_add_f32 v{S+i}, v{S+i}, v{b+j}")

    def reduce_all(base):
        for sh in ("row_shr:1", "row_shr:2", "row_shr:4", "row_shr:8"):
            k("s_nop 1")
            for i in range(NR):
                k(f"v_add_f32_dpp v{base+i}, v{base+i}, v{base+i} {sh} row_mask:0xf bank_mask:0xf bound_ctrl:0")
        k("s_nop 1")
        for i in range(NR):
            k(f"v_add_f32_dpp v{base+i}, v{base+i}, v{base+i} row_bcast:15 row_mask:0xa bank_mask:0xf")
        k("s_nop 1")
        for i in range(NR):
            k(f"v_add_f32_dpp v{base+i}, v{base+i}, v{base+i} row_bcast:31 row_mask:0xc bank_mask:0xf")
        k("s_nop 1")
        for i in range(NR):
            k(f"v_readlane_b32 s{30+i}, v{base+i}, 63")
        k("s_nop 1")

    reduce_all(S)
    k("v_mov_b32 v6, 0x3b124925")
    for i in range(NR):
        k(f"v_mul_f32 v{S+8+i}, s{30+i}, v6")
        k(f"v_mov_b32 v{S+i}, 0")
    for j in range(8):
        for i in range(NR):
            k(f"v_sub_f32 v7, v{V+8*i+j}, v{S+8+i}")
            k(f"v_fma_f32 v{S+i}, v7, v7, v{S+i}")
    for i in range(NR):
        k(f"v_cndmask_b32 v{S+i}, 0, v{S+i}, s[26:27]")
    reduce_all(S)
    for i in range(NR):
        k(f"v_mul_f32 v{S+i}, s{30+i}, v6")
        k(f"v_cvt_pk_bf16_f32 v7, v{S+8+i}, v{S+i}")
        k(f"v_lshlrev_b32 v{S+8+i}, 16, v7")
        k(f"v_and_b32 v{S+i}, 0xffff0000, v7")
        k(f"v_add_f32 v{S+i}, 0x3727c5ac, v{S+i}")
        k(f"v_cvt_pk_bf16_f32 v7, v{S+i}, v{S+i}")
        k(f"v_lshlrev_b32 v{S+i}, 16, v7")
        k(f"v_sqrt_f32 v{S+i}, v{S+i}")
    for i in range(NR):
        k(f"v_cvt_pk_bf16_f32 v7, v{S+i}, v{S+i}")
        k(f"v_lshlrev_b32 v{S+i}, 16, v7")
        k(f"v_rcp_f32 v{S+16+i}, v{S+i}")
    for i in range(NR):
        b = V + 8 * i
        for j in range(4):
            k(f"v_sub_f32 v{b+2*j}, v{b+2*j}, v{S+8+i}")
            k(f"v_sub_f32 v{b+2*j+1}, v{b+2*j+1}, v{S+8+i}")
            k(f"v_cvt_pk_bf16_f32 v7, v{b+2*j}, v{b+2*j+1}")
            k(f"v_lshlrev_b32 v{b+2*j}, 16, v7")
            k(f"v_and_b32 v{b+2*j+1}, 0xffff0000, v7")
        for j in range(8):
            k(f"v_mul_f32 v8, v{b+j}, v{S+16+i}")
            k(f"v_fma_f32 v9, -v8, v{S+i}, v{b+j}")
            k(f"v_fma_f32 v{b+j}, v9, v{S+16+i}, v8")
        for j in range(4):
            k(f"v_cvt_pk_bf16_f32 v{16+4*i+j}, v{b+2*j}, v{b+2*j+1}")
        k(f"buffer_store_dwordx4 v[{16+4*i}:{19+4*i}], v3, s[12:15], s25 offen")
        k("s_add_u32 s25, s25, 896")
    k("s_mov_b64 exec, s[26:27]")
    for i in range(NR):
        k(f"ds_write_b128 v5, v[{16+4*i}:{19+4*i}] offset:{i*912}")
    k("s_mov_b64 exec, -1")
    k("s_waitcnt lgkmcnt(0)")
    k("s_barrier")
    k("v_and_b32 v6, 3, v0")
    k("v_lshrrev_b32 v7, 2, v0")
    k("v_mul_u32_u24 v8, 8*912, v6")
    k("v_lshl_add_u32 v8, v7, 1, v8")
    k("v_lshlrev_b32 v9, 12, v7")
    k("v_lshl_add_u32 v9, v6, 4, v9")
    k("s_lshl_b32 s29, s3, 6")
    k(f"s_add_u32 s29, s29, {WS_XNT}")
    for kk in range(7):
        for e in range(8):
            k(f"ds_read_u16 v{24+e}, v8 offset:{e*912+128*kk}")
        k("s_waitcnt lgkmcnt(0)")
        for e in range(4):
            k(f"v_lshl_or_b32 v{16+e}, v{25+2*e}, 16, v{24+2*e}")
        k("buffer_store_dwordx4 v[16:19], v9, s[12:15], s29 offen")
        k("s_add_u32 s29, s29, 262144")
        k("s_nop 1")


def role_tr(k):
    k("s_load_dwordx2 s[4:5], s[0:1], 64")
    k("s_load_dwordx2 s[16:17], s[0:1], 80")
    k("s_load_dwordx2 s[6:7], s[0:1], 112")
    k("s_waitcnt lgkmcnt(0)")
    srd(k, 12, 6, 0x10000000)
    k("s_cmp_ge_u32 s3, 196")
    k("s_cbranch_scc1 L_tr_w2")
    k("s_mul_hi_u32 s20, s3, 153391690")
    k("s_mul_i32 s21, s20, 28")
    k("s_sub_u32 s21, s3, s21")
    k("s_mov_b32 s22, 3584")
    k("s_mov_b32 s23, 896")
    k(f"s_mov_b32 s24, {WS_W1T}")
    k("s_branch L_tr_go")
    k.label("L_tr_w2")
    k("s_sub_u32 s25, s3, 196")
    k("s_mul_hi_u32 s20, s25, 613566757")
    k("s_mul_i32 s21, s20, 7")
    k("s_sub_u32 s21, s25, s21")
    k("s_mov_b32 s4, s16")
    k("s_mov_b32 s5, s17")
    k("s_mov_b32 s22, 896")
    k("s_mov_b32 s23, 3584")
    k(f"s_mov_b32 s24, {WS_W2T}")
    k.label("L_tr_go")
    srd(k, 8, 4, D * F * 2)
    k("s_lshl_b32 s26, s20, 6")
    k("s_mul_i32 s26, s26, s22")
    k("s_lshl_b32 s27, s21, 7")
    k("s_add_u32 s26, s26, s27")
    k("s_lshl_b32 s27, s21, 6")
    k("s_mul_i32 s27, s27, s23")
    k("s_lshl_b32 s28, s20, 7")
    k("s_add_u32 s27, s27, s28")
    k("s_add_u32 s27, s27, s24")
    k("v_and_b32 v1, 7, v0")
    k("v_lshrrev_b32 v2, 3, v0")
    k("v_mul_lo_u32 v3, v2, s22")
    k("v_lshl_add_u32 v3, v1, 4, v3")
    k("s_lshl_b32 s29, s22, 5")
    k("s_add_u32 s29, s29, s26")
    k("buffer_load_dwordx4 v[8:11], v3, s[8:11], s26 offen")
    k("buffer_load_dwordx4 v[12:15], v3, s[8:11], s29 offen")
    k("v_mul_u32_u24 v4, 144, v2")
    k("v_lshl_add_u32 v4, v1, 4, v4")
    k("s_waitcnt vmcnt(1)")
    k("ds_write_b128 v4, v[8:11]")
    k("s_waitcnt vmcnt(0)")
    k("ds_write_b128 v4, v[12:15] offset:4608")
    k("s_waitcnt lgkmcnt(0)")
    k("s_barrier")
    k("v_mul_u32_u24 v5, 8*144, v1")
    k("v_lshl_add_u32 v5, v2, 1, v5")
    k("v_mul_lo_u32 v6, v2, s23")
    k("v_lshl_add_u32 v6, v1, 4, v6")
    k("s_lshl_b32 s29, s23, 5")
    k("s_add_u32 s29, s29, s27")
    for i in range(2):
        for e in range(8):
            k(f"ds_read_u16 v{16+8*i+e}, v5 offset:{e*144+64*i}")
    k("s_waitcnt lgkmcnt(0)")
    for i in range(2):
        for e in range(4):
            k(f"v_lshl_or_b32 v{8+4*i+e}, v{17+8*i+2*e}, 16, v{16+8*i+2*e}")
    k("buffer_store_dwordx4 v[8:11], v6, s[12:15], s27 offen")
    k("buffer_store_dwordx4 v[12:15], v6, s[12:15], s29 offen")


def gen_prep():
    k = Kern("prep_kernel", vgpr=256 if STAMPS else 136)
    k("s_cmp_ge_u32 s2, 448")
    k("s_cbranch_scc1 L_prep_b")
    role_kgen(k)
    k("s_endpgm")
    k.label("L_prep_b")
    k("s_sub_u32 s3, s2, 448")
    k("s_cmp_ge_u32 s3, 64")
    k("s_cbranch_scc1 L_prep_c")
    role_ln(k)
    k("s_endpgm")
    k.label("L_prep_c")
    k("s_sub_u32 s3, s3, 64")
    k("s_cmp_ge_u32 s3, 392")
    k("s_cbranch_scc1 L_prep_end")
    role_tr(k)
    k.label("L_prep_end")
    return k


def role_gemm1(k):
    k("s_load_dwordx2 s[4:5], s[0:1], 72")
    k("s_load_dwordx2 s[6:7], s[0:1], 112")
    k("s_mul_hi_u32 s20, s3, 306783379")
    k("s_mul_i32 s21, s20, 14")
    k("s_sub_u32 s21, s3, s21")
    k("v_and_b32 v1, 63, v0")
    k("v_lshrrev_b32 v2, 6, v0")
    k("s_nop 0")
    k("v_readfirstlane_b32 s22, v2")
    k("s_waitcnt lgkmcnt(0)")
    srd(k, 8, 4, F * 2)
    srd(k, 12, 6, 0x10000000)
    k("s_lshr_b32 s23, s22, 1")
    k("s_and_b32 s24, s22, 1")
    k("v_lshrrev_b32 v3, 3, v0")
    k("v_and_b32 v4, 7, v0")
    k("v_mul_u32_u24 v5, 896, v3")
    k("v_lshl_add_u32 v5, v4, 4, v5")
    k("s_mul_i32 s25, s20, 128*896")
    k("s_mul_i32 s26, s21, 128*896")
    k(f"s_add_u32 s26, s26, {WS_W1T}")
    for i in range(4):
        k(f"v_add_u32 v{6+i}, {i*28672}, v5")
    k("v_mul_u32_u24 v10, 144, v3")
    k("v_lshl_add_u32 v10, v4, 4, v10")
    k("v_add_u32 v80, 36864, v10")
    k("v_and_b32 v11, 31, v1")
    k("v_lshrrev_b32 v12, 5, v1")
    k("v_mul_u32_u24 v13, 144, v11")
    k("v_lshl_add_u32 v13, v12, 4, v13")
    k("s_mul_i32 s27, s23, 64*144")
    k("s_mul_i32 s28, s24, 64*144")
    k("s_add_u32 s28, s28, 18432")
    k("v_add_u32 v14, s27, v13")
    k("v_add_u32 v15, s28, v13")
    ACC = 96
    ST = [16, 160]

    def gload(kc):
        st = ST[kc & 1]
        k(f"s_add_u32 s29, s25, {kc*128}")
        k(f"s_add_u32 s30, s26, {kc*128}")
        for i in range(4):
            k(f"buffer_load_dwordx4 v[{st+4*i}:{st+4*i+3}], v{6+i}, s[12:15], s29 offen")
        for i in range(4):
            k(f"buffer_load_dwordx4 v[{st+16+4*i}:{st+16+4*i+3}], v{6+i}, s[12:15], s30 offen")

    def lwrite(kc, outstanding):
        st = ST[kc & 1]
        va = 80 if (kc & 1) else 10
        k(f"s_waitcnt vmcnt({outstanding})")
        for i in range(4):
            k(f"ds_write_b128 v{va}, v[{st+4*i}:{st+4*i+3}] offset:{i*4608}")
        for i in range(4):
            k(f"ds_write_b128 v{va}, v[{st+16+4*i}:{st+16+4*i+3}] offset:{18432+i*4608}")

    gload(0)
    gload(1)
    for r in range(64):
        k(f"v_mov_b32 v{ACC+r}, 0")
    lwrite(0, 8)
    k("s_waitcnt lgkmcnt(0)")
    k("s_barrier")
    FR = 48
    for kc in range(7):
        buf = kc & 1
        if kc + 2 < 7:
            gload(kc + 2)
        for ks in range(4):
            o = buf * 36864 + ks * 32
            f = 192 + 16 * ks
            k(f"ds_read_b128 v[{f}:{f+3}], v14 offset:{o}")
            k(f"ds_read_b128 v[{f+4}:{f+7}], v14 offset:{o+32*144}")
            k(f"ds_read_b128 v[{f+8}:{f+11}], v15 offset:{o}")
            k(f"ds_read_b128 v[{f+12}:{f+15}], v15 offset:{o+32*144}")
        for ks in range(4):
            f = 192 + 16 * ks
            k(f"s_waitcnt lgkmcnt({12-4*ks})")
            for mi in range(2):
                for ni in range(2):
                    a = ACC + 16 * (2 * mi + ni)
                    k(f"v_mfma_f32_32x32x16_bf16 v[{a}:{a+15}], v[{f+4*mi}:{f+4*mi+3}], v[{f+8+4*ni}:{f+8+4*ni+3}], v[{a}:{a+15}]")
        if kc < 6:
            lwrite(kc + 1, 8 if kc + 2 < 7 else 0)
        k("s_waitcnt lgkmcnt(0)")
        k("s_barrier")
    k("s_nop 15")
    k("s_nop 15")
    k("s_lshl_b32 s29, s21, 7")
    k("s_lshl_b32 s30, s24, 6")
    k("s_add_u32 s29, s29, s30")
    k("v_add_u32 v16, s29, v11")
    k("v_lshlrev_b32 v16, 1, v16")
    k("buffer_load_ushort v17, v16, s[8:11], 0 offen")
    k("buffer_load_ushort v18, v16, s[8:11], 0 offen offset:64")
    k("s_lshl_b32 s29, s20, 7")
    k("s_lshl_b32 s30, s23, 6")
    k("s_add_u32 s29, s29, s30")
    k("v_lshlrev_b32 v19, 2, v12")
    k("v_add_u32 v19, s29, v19")
    k("v_mul_u32_u24 v19, 3584, v19")
    k("v_add_u32 v19, v19, v16")
    k(f"v_add_u32 v19, {WS_H}, v19")
    k("s_waitcnt vmcnt(0)")
    k("v_lshlrev_b32 v17, 16, v17")
    k("v_lshlrev_b32 v18, 16, v18")
    for mi in range(2):
        for ni in range(2):
            for r in range(16):
                a = ACC + 16 * (2 * mi + ni) + r
                row = 32 * mi + 8 * (r >> 2) + (r & 3)
                k(f"v_cvt_pk_bf16_f32 v20, v{a}, v{a}")
                k("v_lshlrev_b32 v20, 16, v20")
                k(f"v_add_f32 v20, v20, v{17+ni}")
                k("v_cvt_pk_bf16_f32 v20, v20, v20")
                k("v_lshlrev_b32 v20, 16, v20")
                k("v_max_f32 v20, 0, v20")
                k("v_mul_f32 v20, v20, v20")
                k(f"v_cvt_pk_bf16_f32 v{a}, v20, v20")
                k(f"s_mov_b32 s29, {row*3584+64*ni}")
                k(f"buffer_store_short v{a}, v19, s[12:15], s29 offen")


def role_conv(k):
    CP = 7680
    k("s_load_dwordx2 s[6:7], s[0:1], 112")
    k("v_and_b32 v1, 63, v0")
    k("v_lshrrev_b32 v2, 6, v0")
    k("s_nop 0")
    k("v_readfirstlane_b32 s22, v2")
    k("s_waitcnt lgkmcnt(0)")
    srd(k, 12, 6, 0x10000000)
    k("s_lshl_b32 s20, s3, 12")
    k(f"s_add_u32 s20, s20, {WS_XNT}")
    k("v_lshlrev_b32 v3, 4, v0")
    k("buffer_load_dwordx4 v[40:43], v3, s[12:15], s20 offen")
    k("s_mul_i32 s21, s3, %d" % (KU_STRIDE * 4))
    k(f"s_add_u32 s21, s21, {WS_K}")
    k("v_lshlrev_b32 v4, 3, v0")
    k("v_sub_u32 v4, 2047, v4")
    k("v_mov_b32 v7, 0x7ff00000")
    for e in range(16):
        k(f"v_subrev_u32 v5, {e}, v4")
        k("v_cmp_gt_i32 vcc, 0, v5")
        k("v_cvt_f32_u32 v8, v5")
        k("v_cvt_pk_bf16_f32 v8, v8, v8")
        k("v_lshlrev_b32 v8, 16, v8")
        k("v_cvt_u32_f32 v6, v8")
        k("v_lshrrev_b32 v8, 23, v8")
        k("v_subrev_u32 v8, 134, v8")
        k("v_max_i32 v8, 0, v8")
        k("v_lshrrev_b32 v6, v8, v6")
        k("v_lshl_add_u32 v6, v8, 7, v6")
        k("v_lshlrev_b32 v6, 2, v6")
        if e >= 8:
            k("v_cndmask_b32 v6, v6, v7, vcc")
        k(f"buffer_load_dword v{96+e}, v6, s[12:15], s21 offen")
    k("v_mov_b32 v20, 0")
    k("v_mov_b32 v21, 0")
    k("v_mov_b32 v22, 0")
    k("v_mov_b32 v23, 0")
    k("v_add_u32 v36, 33280, v3")
    k("v_cmp_gt_u32 vcc, 160, v0")
    k("s_and_saveexec_b64 s[24:25], vcc")
    k("ds_write_b128 v3, v[20:23]")
    k("s_mov_b64 exec, s[24:25]")
    k("v_cmp_gt_u32 vcc, 4, v0")
    k("s_and_saveexec_b64 s[24:25], vcc")
    for part in range(2):
        for s_ in range(8):
            k(f"ds_write_b128 v{36 if part else 3}, v[20:23] offset:{CP+s_*4160+4096}")
    k("s_mov_b64 exec, s[24:25]")
    k("v_lshrrev_b32 v5, 2, v0")
    k("v_and_b32 v6, 3, v0")
    k("v_mul_u32_u24 v5, 80, v5")
    k("v_lshl_add_u32 v5, v6, 4, v5")
    k("s_waitcnt vmcnt(16)")
    k(f"ds_write_b128 v5, v[40:43] offset:{32*80}")
    k("s_waitcnt vmcnt(0)")
    for p_ in range(8):
        a_, b_ = 96 + 2 * p_, 97 + 2 * p_
        k(f"v_cvt_pk_bf16_f32 v{8+p_}, v{a_}, v{b_}")
        k(f"v_lshlrev_b32 v32, 16, v{8+p_}")
        k(f"v_and_b32 v33, 0xffff0000, v{8+p_}")
        k(f"v_sub_f32 v32, v{a_}, v32")
        k(f"v_sub_f32 v33, v{b_}, v33")
        k(f"v_cvt_pk_bf16_f32 v{24+p_}, v32, v33")
    for part in range(2):
        va = 36 if part else 3
        src = 24 if part else 8
        for s_ in range(8):
            tmp = 44 + 4 * (s_ & 3)
            if s_ % 2 == 0:
                base = src + s_ // 2
                if base % 2 == 0:
                    k(f"ds_write_b128 v{va}, v[{base}:{base+3}] offset:{CP+s_*4160}")
                else:
                    for q in range(4):
                        k(f"v_mov_b32 v{tmp+q}, v{base+q}")
                    k(f"ds_write_b128 v{va}, v[{tmp}:{tmp+3}] offset:{CP+s_*4160}")
            else:
                for q in range(4):
                    lo = src + q + (s_ - 1) // 2
                    k(f"v_alignbit_b32 v{tmp+q}, v{lo+1}, v{lo}, 16")
                k(f"ds_write_b128 v{va}, v[{tmp}:{tmp+3}] offset:{CP+s_*4160}")
    k("s_waitcnt lgkmcnt(0)")
    k("s_barrier")
    k("s_and_b32 s23, s22, 1")
    k("s_lshr_b32 s24, s22, 1")
    k("v_and_b32 v4, 31, v1")
    k("v_lshrrev_b32 v5, 5, v1")
    k("v_sub_u32 v6, 7, v4")
    k("v_and_b32 v6, 7, v6")
    k("v_sub_u32 v7, 31, v4")
    k("v_lshl_add_u32 v7, v5, 3, v7")
    k("s_lshl_b32 s25, s23, 4")
    k("v_add_u32 v7, s25, v7")
    k("v_sub_u32 v7, v7, v6")
    k("v_lshlrev_b32 v7, 1, v7")
    k("v_mul_u32_u24 v8, 4160, v6")
    k("v_add_u32 v7, v7, v8")
    k("s_mul_i32 s25, s24, 33280")
    k(f"s_add_u32 s25, s25, {CP}")
    k("v_add_u32 v7, s25, v7")
    k("v_add_u32 v8, 1, v4")
    k("v_mul_u32_u24 v8, 80, v8")
    k("v_lshl_add_u32 v8, v5, 4, v8")
    k("s_lshl_b32 s25, s23, 5")
    k("v_add_u32 v8, s25, v8")
    A0, A1 = 64, 80
    for r in range(32):
        k(f"v_mov_b32 v{A0+r}, 0")
    FR = [16, 28]

    def reads(r):
        f = FR[r & 1]
        k(f"ds_read_b128 v[{f}:{f+3}], v7 offset:{64*(63-r)}")
        k(f"ds_read_b128 v[{f+4}:{f+7}], v8 offset:{80*(63-r)}")
        if r < 32:
            k(f"ds_read_b128 v[{f+8}:{f+11}], v8 offset:{80*(31-r)}")

    stamp(k, 1, "conv")
    reads(0)
    for r in range(64):
        f = FR[r & 1]
        if r < 63:
            reads(r + 1)
            k(f"s_waitcnt lgkmcnt({3 if r+1 < 32 else 2})")
        else:
            k("s_waitcnt lgkmcnt(0)")
        k(f"v_mfma_f32_32x32x16_bf16 v[{A1}:{A1+15}], v[{f+4}:{f+7}], v[{f}:{f+3}], v[{A1}:{A1+15}]")
        if r < 32:
            k(f"v_mfma_f32_32x32x16_bf16 v[{A0}:{A0+15}], v[{f+8}:{f+11}], v[{f}:{f+3}], v[{A0}:{A0+15}]")
    k("s_nop 15")
    k("s_nop 15")
    stamp(k, 2, "conv")
    k("s_barrier")
    k("s_lshl_b32 s25, s22, 13")
    k("v_lshlrev_b32 v9, 2, v1")
    k("v_add_u32 v10, s25, v9")
    for r in range(32):
        k(f"ds_write_b32 v10, v{A0+r} offset:{256*r}")
    k("s_waitcnt lgkmcnt(0)")
    k("s_barrier")
    k("s_lshl_b32 s25, s22, 11")
    k("v_add_u32 v10, s25, v9")
    for w in range(4):
        for q in range(8):
            k(f"ds_read_b32 v{16+8*w+q}, v10 offset:{8192*w+256*q}")
    k("s_waitcnt lgkmcnt(0)")
    for q in range(8):
        k(f"v_add_f32 v{16+q}, v{16+q}, v{24+q}")
        k(f"v_add_f32 v{32+q}, v{32+q}, v{40+q}")
        k(f"v_add_f32 v{16+q}, v{16+q}, v{32+q}")
        k(f"v_cvt_pk_bf16_f32 v{16+q}, v{16+q}, v{16+q}")
    k("s_lshl_b32 s25, s24, 11")
    k("s_lshl_b32 s26, s23, 10")
    k("s_add_u32 s25, s25, s26")
    k("s_lshl_b32 s26, s3, 12")
    k("s_add_u32 s25, s25, s26")
    k(f"s_add_u32 s25, s25, {WS_YT}")
    k("v_lshlrev_b32 v9, 8, v5")
    k("v_lshl_add_u32 v9, v4, 1, v9")
    for q in range(8):
        k(f"buffer_store_short v{16+q}, v9, s[12:15], s25 offen offset:{64*(8*(q>>2)+(q&3))}")
    k("s_waitcnt vmcnt(0)")
    stamp(k, 3, "conv")


def gen_mid():
    k = Kern("mid_kernel", vgpr=256)
    k("s_cmp_ge_u32 s2, 224")
    k("s_cbranch_scc1 L_mid_b")
    k("s_mov_b32 s3, s2")
    role_gemm1(k)
    k("s_endpgm")
    k.label("L_mid_b")
    k("s_sub_u32 s3, s2, 224")
    k("s_cmp_ge_u32 s3, 448")
    k("s_cbranch_scc1 L_mid_end")
    role_conv(k)
    k.label("L_mid_end")
    return k


def role_gemm2(k):
    k("s_load_dwordx2 s[4:5], s[0:1], 88")
    k("s_load_dwordx2 s[6:7], s[0:1], 112")
    k("s_lshr_b32 s21, s3, 3")
    k("s_mul_hi_u32 s20, s21, 613566757")
    k("s_mul_i32 s23, s20, 7")
    k("s_sub_u32 s21, s21, s23")
    k("s_lshl_b32 s20, s20, 3")
    k("s_and_b32 s23, s3, 7")
    k("s_add_u32 s20, s20, s23")
    k("v_and_b32 v1, 63, v0")
    k("v_lshrrev_b32 v2, 6, v0")
    k("s_nop 0")
    k("v_readfirstlane_b32 s22, v2")
    k("s_waitcnt lgkmcnt(0)")
    srd(k, 8, 4, D * 2)
    srd(k, 12, 6, 0x10000000)
    k("s_lshr_b32 s23, s22, 1")
    k("s_and_b32 s24, s22, 1")
    k("v_lshrrev_b32 v3, 4, v0")
    k("v_and_b32 v4, 15, v0")
    k("v_mul_u32_u24 v5, 3584, v3")
    k("v_lshl_add_u32 v5, v4, 4, v5")
    k("s_mul_i32 s25, s20, 64*3584")
    k(f"s_add_u32 s25, s25, {WS_H}")
    k("s_mul_i32 s26, s21, 64*3584")
    k(f"s_add_u32 s26, s26, {WS_W2T}")
    for i in range(4):
        k(f"v_add_u32 v{6+i}, {i*16*3584}, v5")
    k("v_mul_u32_u24 v10, 272, v3")
    k("v_lshl_add_u32 v10, v4, 4, v10")
    k("v_and_b32 v11, 31, v1")
    k("v_lshrrev_b32 v12, 5, v1")
    k("v_mul_u32_u24 v13, 272, v11")
    k("v_lshl_add_u32 v13, v12, 4, v13")
    k("s_mul_i32 s27, s23, 32*272")
    k("s_mul_i32 s28, s24, 32*272")
    k("s_add_u32 s28, s28, 17408")
    k("v_add_u32 v14, s27, v13")
    k("v_add_u32 v15, s28, v13")
    ACC = 64
    STS = [80, 112]

    def gload(kc):
        ST = STS[kc & 1]
        for i in range(4):
            k(f"buffer_load_dwordx4 v[{ST+4*i}:{ST+4*i+3}], v{6+i}, s[12:15], s25 offen")
        for i in range(4):
            k(f"buffer_load_dwordx4 v[{ST+16+4*i}:{ST+16+4*i+3}], v{6+i}, s[12:15], s26 offen")
        k("s_add_u32 s25, s25, 256")
        k("s_add_u32 s26, s26, 256")

    def lwrite(kc, outstanding):
        ST = STS[kc & 1]
        buf = kc & 1
        k(f"s_waitcnt vmcnt({outstanding})")
        for i in range(4):
            k(f"ds_write_b128 v10, v[{ST+4*i}:{ST+4*i+3}] offset:{buf*34816+i*16*272}")
        for i in range(4):
            k(f"ds_write_b128 v10, v[{ST+16+4*i}:{ST+16+4*i+3}] offset:{buf*34816+17408+i*16*272}")

    gload(0)
    gload(1)
    k("s_lshl_b32 s29, s21, 6")
    k("s_lshl_b32 s30, s24, 5")
    k("s_add_u32 s29, s29, s30")
    k("v_add_u32 v16, s29, v11")
    k("v_lshlrev_b32 v17, 1, v16")
    k("buffer_load_ushort v18, v17, s[8:11], 0 offen")
    k("s_lshl_b32 s29, s20, 6")
    k("s_lshl_b32 s30, s23, 5")
    k("s_add_u32 s29, s29, s30")
    k("v_lshlrev_b32 v20, 2, v12")
    k("v_add_u32 v20, s29, v20")
    k("v_mul_u32_u24 v22, 896, v20")
    k("v_add_u32 v22, v22, v17")
    k(f"v_add_u32 v22, {WS_G}, v22")
    NEPI = 1
    for r in range(16):
        k(f"v_mov_b32 v{ACC+r}, 0")
    lwrite(0, 8 + NEPI)
    k("s_waitcnt lgkmcnt(0)")
    k("s_barrier")
    for kc in range(14):
        buf = kc & 1
        if kc + 2 < 14:
            gload(kc + 2)
        for ks in range(8):
            o = buf * 34816 + ks * 32
            f = 144 + 8 * ks
            k(f"ds_read_b128 v[{f}:{f+3}], v14 offset:{o}")
            k(f"ds_read_b128 v[{f+4}:{f+7}], v15 offset:{o}")
        for ks in range(8):
            f = 144 + 8 * ks
            k(f"s_waitcnt lgkmcnt({14-2*ks})")
            k(f"v_mfma_f32_32x32x16_bf16 v[{ACC}:{ACC+15}], v[{f}:{f+3}], v[{f+4}:{f+7}], v[{ACC}:{ACC+15}]")
        if kc < 13:
            if kc == 0:
                lwrite(1, NEPI + 8)
            else:
                lwrite(kc + 1, 8 if kc + 2 < 14 else 0)
        k("s_waitcnt lgkmcnt(0)")
        k("s_barrier")
    k("s_nop 15")
    k("s_nop 15")
    k("v_lshlrev_b32 v18, 16, v18")
    for r in range(16):
        a = ACC + r
        row = 8 * (r >> 2) + (r & 3)
        yreg = 24 + 2 * (r >> 2) + ((r & 3) >> 1)
        k(f"v_cvt_pk_bf16_f32 v130, v{a}, v{a}")
        k("v_lshlrev_b32 v130, 16, v130")
        k("v_add_f32 v130, v130, v18")
        k("v_cvt_pk_bf16_f32 v130, v130, v130")
        k("v_lshlrev_b32 v130, 16, v130")
        k("v_mul_f32 v131, 0xbfb8aa3b, v130")
        k("v_exp_f32 v131, v131")
        k("s_nop 0")
        k("v_add_f32 v131, 1.0, v131")
        k("v_rcp_f32 v132, v131")
        k("s_nop 0")
        k("v_mul_f32 v133, v130, v132")
        k("v_fma_f32 v134, -v133, v131, v130")
        k("v_fma_f32 v133, v134, v132, v133")
        k(f"v_cvt_pk_bf16_f32 v{a}, v133, v133")
        k(f"s_mov_b32 s29, {row*896}")
        k(f"buffer_store_short v{a}, v22, s[12:15], s29 offen")


def gen_comb():
    k = Kern("comb_kernel", vgpr=96)
    k("s_cmp_ge_u32 s2, 224")
    k("s_cbranch_scc1 L_cb_end")
    k("s_load_dwordx2 s[4:5], s[0:1], 0")
    k("s_load_dwordx2 s[6:7], s[0:1], 112")
    k("s_load_dwordx2 s[16:17], s[0:1], 48")
    k("s_load_dwordx2 s[18:19], s[0:1], 96")
    k("s_mul_hi_u32 s20, s2, 613566757")
    k("s_mul_i32 s21, s20, 7")
    k("s_sub_u32 s21, s2, s21")
    k("v_and_b32 v1, 7, v0")
    k("v_lshrrev_b32 v2, 3, v0")
    k("s_waitcnt lgkmcnt(0)")
    srd(k, 8, 4, L * D * 2)
    srd(k, 12, 6, 0x10000000)
    srd(k, 24, 16, D * 2)
    srd(k, 28, 18, L * D * 2)
    k("s_lshl_b32 s22, s21, 18")
    k("s_lshl_b32 s23, s20, 7")
    k("s_add_u32 s22, s22, s23")
    k(f"s_add_u32 s22, s22, {WS_YT}")
    k("v_lshlrev_b32 v3, 12, v2")
    k("v_lshl_add_u32 v3, v1, 4, v3")
    k("s_add_u32 s23, s22, 131072")
    k("buffer_load_dwordx4 v[8:11], v3, s[12:15], s22 offen")
    k("buffer_load_dwordx4 v[12:15], v3, s[12:15], s23 offen")
    k("s_mul_i32 s32, s20, 64*896")
    k("s_lshl_b32 s33, s21, 7")
    k("s_add_u32 s32, s32, s33")
    k("v_mul_u32_u24 v4, 896, v2")
    k("v_lshl_add_u32 v4, v1, 4, v4")
    k("s_add_u32 s34, s32, 32*896")
    k(f"s_add_u32 s35, s32, {WS_G}")
    k(f"s_add_u32 s36, s34, {WS_G}")
    k("buffer_load_dwordx4 v[16:19], v4, s[8:11], s32 offen")
    k("buffer_load_dwordx4 v[20:23], v4, s[8:11], s34 offen")
    k("buffer_load_dwordx4 v[24:27], v4, s[12:15], s32 offen")
    k("buffer_load_dwordx4 v[28:31], v4, s[12:15], s34 offen")
    k("buffer_load_dwordx4 v[32:35], v4, s[12:15], s35 offen")
    k("buffer_load_dwordx4 v[36:39], v4, s[12:15], s36 offen")
    k("v_lshlrev_b32 v5, 4, v1")
    k("buffer_load_dwordx4 v[40:43], v5, s[24:27], s33 offen")
    k("v_mul_u32_u24 v6, 144, v2")
    k("v_lshl_add_u32 v6, v1, 4, v6")
    k("s_waitcnt vmcnt(8)")
    k("ds_write_b128 v6, v[8:11]")
    k("s_waitcnt vmcnt(7)")
    k("ds_write_b128 v6, v[12:15] offset:4608")
    k("s_waitcnt lgkmcnt(0)")
    k("s_barrier")
    k("v_mul_u32_u24 v7, 8*144, v1")
    k("v_lshl_add_u32 v7, v2, 1, v7")
    for i in range(2):
        for e in range(8):
            k(f"ds_read_u16 v{48+8*i+e}, v7 offset:{e*144+64*i}")
    k("s_waitcnt vmcnt(0) lgkmcnt(0)")
    for i in range(2):
        for e in range(8):
            q = e >> 1
            def half(dst, src):
                if e & 1:
                    k(f"v_and_b32 v{dst}, 0xffff0000, v{src}")
                else:
                    k(f"v_lshlrev_b32 v{dst}, 16, v{src}")
            half(64, 24 + 4 * i + q)
            half(65, 40 + q)
            k("v_mul_f32 v64, v64, v65")
            k("v_cvt_pk_bf16_f32 v64, v64, v64")
            k("v_lshlrev_b32 v64, 16, v64")
            k(f"v_lshlrev_b32 v65, 16, v{48+8*i+e}")
            k("v_add_f32 v64, v64, v65")
            k("v_cvt_pk_bf16_f32 v64, v64, v64")
            k("v_lshlrev_b32 v64, 16, v64")
            half(65, 32 + 4 * i + q)
            k("v_mul_f32 v64, v64, v65")
            k("v_cvt_pk_bf16_f32 v64, v64, v64")
            k("v_lshlrev_b32 v64, 16, v64")
            half(65, 16 + 4 * i + q)
            k(f"v_add_f32 v{70+e}, v64, v65")
        for q in range(4):
            k(f"v_cvt_pk_bf16_f32 v{80+4*i+q}, v{70+2*q}, v{71+2*q}")
    k("buffer_store_dwordx4 v[80:83], v4, s[28:31], s32 offen")
    k("buffer_store_dwordx4 v[84:87], v4, s[28:31], s34 offen")
    k.label("L_cb_end")
    return k


def dispatch(name, roles, vgpr):
    k = Kern(name, vgpr=vgpr)
    base = 0
    for i, (cnt, fn) in enumerate(roles):
        nxt = f"L_{name}_r{i}"
        k(f"s_sub_u32 s3, s2, {base}")
        k(f"s_cmp_ge_u32 s3, {cnt}")
        k(f"s_cbranch_scc1 {nxt}")
        fn(k)
        k("s_endpgm")
        k.label(nxt)
        base += cnt
    return k, base


def gen_gemm2():
    k = Kern("gemm2_kernel", vgpr=256)
    k("s_cmp_ge_u32 s2, 224")
    k("s_cbranch_scc1 L_g2_end")
    k("s_mov_b32 s3, s2")
    k("s_load_dwordx2 s[4:5], s[0:1], 88")
    k("s_load_dwordx2 s[6:7], s[0:1], 112")
    k("s_load_dwordx2 s[16:17], s[0:1], 48")
    k("s_load_dwordx2 s[18:19], s[0:1], 0")
    k("s_load_dwordx2 s[32:33], s[0:1], 96")
    k("s_lshr_b32 s21, s2, 3")
    k("s_mul_hi_u32 s20, s21, 613566757")
    k("s_mul_i32 s23, s20, 7")
    k("s_sub_u32 s21, s21, s23")
    k("s_lshl_b32 s20, s20, 3")
    k("s_and_b32 s23, s2, 7")
    k("s_add_u32 s20, s20, s23")
    k("v_and_b32 v1, 63, v0")
    k("v_lshrrev_b32 v2, 6, v0")
    k("s_nop 0")
    k("v_readfirstlane_b32 s22, v2")
    k("s_waitcnt lgkmcnt(0)")
    srd(k, 8, 4, D * 2)
    srd(k, 12, 6, 0x10000000)
    srd(k, 36, 16, D * 2)
    srd(k, 40, 18, L * D * 2)
    srd(k, 44, 32, L * D * 2)
    k("s_lshr_b32 s23, s22, 1")
    k("s_and_b32 s24, s22, 1")
    k("v_lshrrev_b32 v3, 4, v0")
    k("v_and_b32 v4, 15, v0")
    k("v_mul_u32_u24 v5, 3584, v3")
    k("v_lshl_add_u32 v5, v4, 4, v5")
    k("s_mul_i32 s25, s20, 64*3584")
    k(f"s_add_u32 s25, s25, {WS_H}")
    k("s_mul_i32 s26, s21, 64*3584")
    k(f"s_add_u32 s26, s26, {WS_W2T}")
    for i in range(4):
        k(f"v_add_u32 v{6+i}, {i*16*3584}, v5")
    k("v_mul_u32_u24 v10, 272, v3")
    k("v_lshl_add_u32 v10, v4, 4, v10")
    k("v_and_b32 v11, 31, v1")
    k("v_lshrrev_b32 v12, 5, v1")
    k("v_mul_u32_u24 v13, 272, v11")
    k("v_lshl_add_u32 v13, v12, 4, v13")
    k("s_mul_i32 s27, s23, 32*272")
    k("s_mul_i32 s28, s24, 32*272")
    k("s_add_u32 s28, s28, 17408")
    k("v_add_u32 v14, s27, v13")
    k("v_add_u32 v15, s28, v13")
    ACC = 64
    STS = [80, 112]

    def gload(kc):
        ST = STS[kc & 1]
        for i in range(4):
            k(f"buffer_load_dwordx4 v[{ST+4*i}:{ST+4*i+3}], v{6+i}, s[12:15], s25 offen")
        for i in range(4):
            k(f"buffer_load_dwordx4 v[{ST+16+4*i}:{ST+16+4*i+3}], v{6+i}, s[12:15], s26 offen")
        k("s_add_u32 s25, s25, 256")
        k("s_add_u32 s26, s26, 256")

    def lwrite(kc, outstanding):
        ST = STS[kc & 1]
        buf = kc & 1
        k(f"s_waitcnt vmcnt({outstanding})")
        for i in range(4):
            k(f"ds_write_b128 v10, v[{ST+4*i}:{ST+4*i+3}] offset:{buf*34816+i*16*272}")
        for i in range(4):
            k(f"ds_write_b128 v10, v[{ST+16+4*i}:{ST+16+4*i+3}] offset:{buf*34816+17408+i*16*272}")

    gload(0)
    gload(1)
    k("s_lshl_b32 s29, s21, 6")
    k("s_lshl_b32 s30, s24, 5")
    k("s_add_u32 s29, s29, s30")
    k("v_add_u32 v16, s29, v11")
    k("v_lshlrev_b32 v17, 1, v16")
    k("buffer_load_ushort v18, v17, s[8:11], 0 offen")
    k("buffer_load_ushort v19, v17, s[36:39], 0 offen")
    k("s_lshl_b32 s29, s20, 6")
    k("s_lshl_b32 s30, s23, 5")
    k("s_add_u32 s29, s29, s30")
    k("v_lshlrev_b32 v20, 2, v12")
    k("v_add_u32 v20, s29, v20")
    k("v_lshlrev_b32 v21, 12, v16")
    k("v_lshl_add_u32 v21, v20, 1, v21")
    k(f"v_add_u32 v21, {WS_YT}, v21")
    for q in range(4):
        k(f"buffer_load_dwordx2 v[{24+2*q}:{25+2*q}], v21, s[12:15], 0 offen offset:{16*q}")
    k("v_mul_u32_u24 v22, 896, v20")
    k("v_add_u32 v22, v22, v17")
    for r in range(16):
        row = 8 * (r >> 2) + (r & 3)
        k(f"s_mov_b32 s29, {row*896}")
        k(f"buffer_load_ushort v{32+r}, v22, s[12:15], s29 offen")
        k(f"buffer_load_ushort v{48+r}, v22, s[40:43], s29 offen")
    NEPI = 38
    for r in range(16):
        k(f"v_mov_b32 v{ACC+r}, 0")
    lwrite(0, 8 + NEPI)
    k("s_waitcnt lgkmcnt(0)")
    k("s_barrier")
    for kc in range(14):
        buf = kc & 1
        if kc + 2 < 14:
            gload(kc + 2)
        for ks in range(8):
            o = buf * 34816 + ks * 32
            f = 144 + 8 * ks
            k(f"ds_read_b128 v[{f}:{f+3}], v14 offset:{o}")
            k(f"ds_read_b128 v[{f+4}:{f+7}], v15 offset:{o}")
        for ks in range(8):
            f = 144 + 8 * ks
            k(f"s_waitcnt lgkmcnt({14-2*ks})")
            k(f"v_mfma_f32_32x32x16_bf16 v[{ACC}:{ACC+15}], v[{f}:{f+3}], v[{f+4}:{f+7}], v[{ACC}:{ACC+15}]")
        if kc < 13:
            if kc == 0:
                lwrite(1, NEPI + 8)
            else:
                lwrite(kc + 1, 8 if kc + 2 < 14 else 0)
        k("s_waitcnt lgkmcnt(0)")
        k("s_barrier")
    k("s_nop 15")
    k("s_nop 15")
    k("v_lshlrev_b32 v18, 16, v18")
    k("v_lshlrev_b32 v19, 16, v19")
    for r in range(16):
        a = ACC + r
        row = 8 * (r >> 2) + (r & 3)
        yreg = 24 + 2 * (r >> 2) + ((r & 3) >> 1)
        k(f"v_cvt_pk_bf16_f32 v130, v{a}, v{a}")
        k("v_lshlrev_b32 v130, 16, v130")
        k("v_add_f32 v130, v130, v18")
        k("v_cvt_pk_bf16_f32 v130, v130, v130")
        k("v_lshlrev_b32 v130, 16, v130")
        k("v_mul_f32 v131, 0xbfb8aa3b, v130")
        k("v_exp_f32 v131, v131")
        k("s_nop 0")
        k("v_add_f32 v131, 1.0, v131")
        k("v_rcp_f32 v132, v131")
        k("s_nop 0")
        k("v_mul_f32 v133, v130, v132")
        k("v_fma_f32 v134, -v133, v131, v130")
        k("v_fma_f32 v133, v134, v132, v133")
        k("v_cvt_pk_bf16_f32 v133, v133, v133")
        k("v_lshlrev_b32 v133, 16, v133")
        k(f"v_lshlrev_b32 v134, 16, v{32+r}")
        k("v_mul_f32 v134, v134, v19")
        k("v_cvt_pk_bf16_f32 v134, v134, v134")
        k("v_lshlrev_b32 v134, 16, v134")
        if r & 1:
            k(f"v_and_b32 v135, 0xffff0000, v{yreg}")
        else:
            k(f"v_lshlrev_b32 v135, 16, v{yreg}")
        k("v_add_f32 v134, v134, v135")
        k("v_cvt_pk_bf16_f32 v134, v134, v134")
        k("v_lshlrev_b32 v134, 16, v134")
        k("v_mul_f32 v134, v134, v133")
        k("v_cvt_pk_bf16_f32 v134, v134, v134")
        k("v_lshlrev_b32 v134, 16, v134")
        k(f"v_lshlrev_b32 v135, 16, v{48+r}")
        k("v_add_f32 v134, v134, v135")
        k(f"v_cvt_pk_bf16_f32 v{a}, v134, v134")
        k(f"s_mov_b32 s29, {row*896}")
        k(f"buffer_store_short v{a}, v22, s[44:47], s29 offen")
    k.label("L_g2_end")
    return k


def build():
    k0, n0 = dispatch("prep_kernel", [(448, role_kgen), (64, role_ln), (392, role_tr)], 136)
    k1, n1 = dispatch("mid_kernel", [(224, role_gemm1), (448, role_conv)], 256)
    kernels = [k0, k1, gen_gemm2()]
    launches = [
        ("prep_kernel", n0, 256, 4 * 33 * 528),
        ("mid_kernel", n1, 256, 7680 + 66560),
        ("gemm2_kernel", 224, 256, 69632),
    ]
    hdr = open("recurrent_scan__ssm_conv_s4d__dense_activation_squared_relu__prompt.s.ref").read().split("\n")
    head = [l for l in hdr if l.startswith(";") and "@launch" not in l and "Override" not in l and "grid=ceil" not in l]
    out = head[:]
    for (n, g, b, lds) in launches:
        out.append(f"; @launch kernel={n} grid=({g},1,1) block=({b},1,1) lds={lds}")
    out.append('.amdgcn_target "amdgcn-amd-amdhsa--gfx950"')
    for kk in kernels:
        out.append(kk.text())
    for kk in kernels:
        out.append(kk.desc())
    return "\n".join(out) + "\n"


if __name__ == "__main__":
    dst = sys.argv[1] if len(sys.argv) > 1 else "recurrent_scan__ssm_conv_s4d__dense_activation_squared_relu__prompt.s"
    open(dst, "w").write(build())
    print("wrote", dst)
```
